```python
import torch

def _softmax(x, axis=-1):
    return torch.softmax(x, dim=axis)
def _gelu(x):
    return torch.nn.functional.gelu(x, approximate="tanh")
def _silu(x):
    return torch.nn.functional.silu(x)
def _sigmoid(x):
    return torch.sigmoid(x)
def _layernorm(x, axis=-1, eps=1e-5):
    m = x.mean(dim=axis, keepdim=True)
    v = x.var(dim=axis, keepdim=True, unbiased=False)
    return (x - m) / torch.sqrt(v + eps)
def _scatter_add(tgt, idx, src, axis=0):
    return tgt.clone().index_add_(axis, idx, src)
def _segment_sum(src, seg, n):
    out = torch.zeros((n,) + src.shape[1:], dtype=src.dtype)
    return out.index_add_(0, seg, src)
def _pad(x, pw):
    flat = tuple(v for pair in reversed(pw) for v in pair)
    return torch.nn.functional.pad(x, flat)

kernel_name = 'gated_mix__linear_kernel_hedgehog__grouped_kv_mqa__prompt'

def setup_inputs():

    _w = (lambda a: (lambda t: t.to(torch.bfloat16) if t.is_floating_point() else t)(torch.as_tensor(a)))
    def _A_setup():
        B, S, D, H = 1, 2048, 640, 32
        Dh = D // H
        return {
            "x": _w((lambda *s: torch.randn(*s, dtype=torch.bfloat16) * 0.05)(B, S, D)),
            "wqkv": _w((lambda *s: torch.randn(*s, dtype=torch.bfloat16) * 1.6)(D, 3 * D)),
            "w_phi": _w((lambda *s: torch.randn(*s, dtype=torch.bfloat16) * 1.6)(H, Dh, Dh) * (Dh ** -0.5)),
            "wo": _w((lambda *s: torch.randn(*s, dtype=torch.bfloat16) * 0.05)(D, D)),
        }
    _A_in = _A_setup()

    def _B_setup():
        B, S, D, H = 1, 2048, 640, 32
        Dh = D // H
        return {
            "x": _w((lambda *s: torch.randn(*s, dtype=torch.bfloat16) * 0.05)(B, S, D)),
            "wq": _w((lambda *s: torch.randn(*s, dtype=torch.bfloat16) * 1.6)(D, H * Dh)),
            "wk": _w((lambda *s: torch.randn(*s, dtype=torch.bfloat16) * 1.6)(D, Dh)),
            "wv": _w((lambda *s: torch.randn(*s, dtype=torch.bfloat16) * 0.05)(D, Dh)),
            "wo": _w((lambda *s: torch.randn(*s, dtype=torch.bfloat16) * 0.05)(H * Dh, D)),
        }
    _B_in = _B_setup()

    return {
        "A_x": _A_in["x"],
        "A_wqkv": _A_in["wqkv"],
        "A_w_phi": _A_in["w_phi"],
        "A_wo": _A_in["wo"],
        "B_x": _B_in["x"],
        "B_wq": _B_in["wq"],
        "B_wk": _B_in["wk"],
        "B_wv": _B_in["wv"],
        "B_wo": _B_in["wo"],
        "gate_w": _w((lambda *s: torch.randn(*s, dtype=torch.bfloat16) * 0.05)(640) * 16.0),
    }

def reference(A_x, A_wqkv, A_w_phi, A_wo, B_x, B_wq, B_wk, B_wv, B_wo, gate_w):
    def _A_ref(x, wqkv, w_phi, wo):
        B, S, D = x.shape
        H = 32; Dh = D // H
        qkv = (lambda x, *d: x.permute(*d))((x @ wqkv).reshape(B, S, 3, H, Dh), 2, 0, 3, 1, 4)
        q, k, v = qkv[0], qkv[1], qkv[2]
        pq = torch.einsum("bhsd,hdf->bhsf", q, w_phi)
        pk = torch.einsum("bhsd,hdf->bhsf", k, w_phi)
        phi_q = torch.concatenate([_softmax(pq, axis=-1), _softmax(-pq, axis=-1)], axis=-1)
        phi_k = torch.concatenate([_softmax(pk, axis=-1), _softmax(-pk, axis=-1)], axis=-1)
        kv = torch.einsum("bhsf,bhsd->bhfd", phi_k, v)
        z  = torch.einsum("bhsf->bhf", phi_k)
        num = torch.einsum("bhqf,bhfd->bhqd", phi_q, kv)
        den = torch.einsum("bhqf,bhf->bhq", phi_q, z)[..., None] + 1e-6
        o = num / den
        return (lambda x, *d: x.permute(*d))(o, 0, 2, 1, 3).reshape(B, S, D) @ wo

    def _B_ref(x, wq, wk, wv, wo):
        B, S, D = x.shape
        H = 32
        Dh = D // H
        q = (lambda x, *d: x.permute(*d))((x @ wq).reshape(B, S, H, Dh), 0, 2, 1, 3)
        k = x @ wk
        v = x @ wv
        scores = torch.einsum("bhqd,bkd->bhqk", q, k) * (Dh ** -0.5)
        p = _softmax(scores, axis=-1)
        o = torch.einsum("bhqk,bkd->bhqd", p, v)
        return (lambda x, *d: x.permute(*d))(o, 0, 2, 1, 3).reshape(B, S, H * Dh) @ wo

    x = A_x
    g = _sigmoid((x * gate_w).sum(-1, keepdims=True))
    a = _A_ref(x, A_wqkv, A_w_phi, A_wo)
    b = _B_ref(x, B_wq, B_wk, B_wv, B_wo)
    return g * a + (1 - g) * b
```

```python
import re

class Asm:
    def __init__(self):
        self.lines = []
    def e(self, s):
        for ln in s.strip("\n").split("\n"):
            ln = ln.strip()
            if ln:
                self.lines.append("    " + ln)
    def label(self, name):
        self.lines.append(name + ":")
    def raw(self, s):
        self.lines.append(s)
    def c(self, s):
        self.lines.append("    ; " + s)
    def text(self):
        return "\n".join(self.lines) + "\n"

def vr(b, n=1, p="v"):
    return f"{p}{b}" if n == 1 else f"{p}[{b}:{b+n-1}]"
def sr(b, n=1):
    return f"s{b}" if n == 1 else f"s[{b}:{b+n-1}]"

_REG = re.compile(r"\b([vas])(\d+)\b|\b([vas])\[(\d+):(\d+)\]")
def regs_of(op):
    out = set()
    for m in _REG.finditer(op):
        if m.group(1):
            out.add((m.group(1), int(m.group(2))))
        else:
            for i in range(int(m.group(4)), int(m.group(5)) + 1):
                out.add((m.group(3), i))
    if re.search(r"\bvcc\b", op): out.add(("vcc", 0))
    if re.search(r"\bexec\b", op): out.add(("exec", 0))
    if re.search(r"\bm0\b", op): out.add(("m0", 0))
    return out

TRANS = ("v_exp_f32", "v_log_f32", "v_rcp_f32", "v_rsq_f32", "v_sqrt_f32", "v_sin_f32", "v_cos_f32")
def passes(op):
    if "32x32x4_2b" in op: return 16
    if "32x32" in op: return 8
    if "16x16" in op: return 4
    return 4

def split_ops(rest):
    ops, depth, cur = [], 0, ""
    for ch in rest:
        if ch == "[": depth += 1
        if ch == "]": depth -= 1
        if ch == "," and depth == 0:
            ops.append(cur.strip()); cur = ""
        else:
            cur += ch
    if cur.strip(): ops.append(cur.strip())
    return ops

class Ins:
    pass

def parse(line):
    s = line.split(";")[0].strip()
    if not s or s.endswith(":") or s.startswith("."):
        return None
    parts = s.split(None, 1)
    op = parts[0]
    rest = parts[1] if len(parts) > 1 else ""
    ops = split_ops(rest)
    I = Ins(); I.op = op; I.text = s; I.ops = ops
    I.ws = 1
    I.kind = "other"; I.dst = set(); I.src = set()
    I.srcC = set(); I.srcAB = set()
    if op == "s_nop":
        I.ws = int(ops[0], 0) + 1
        return I
    if op.startswith("v_mfma") or op.startswith("v_smfmac"):
        I.kind = "mfma"; I.passes = passes(op)
        I.dst = regs_of(ops[0])
        I.srcAB = regs_of(ops[1]) | regs_of(ops[2])
        if op.startswith("v_smfmac"):
            I.srcC = set(I.dst); I.srcAB |= regs_of(ops[3].split()[0])
        else:
            I.srcC = regs_of(ops[3].split()[0])
        I.src = I.srcAB | I.srcC
        return I
    if op.startswith("v_"):
        I.kind = "valu"
        I.trans = any(op.startswith(t) for t in TRANS)
        I.dpp = "row_" in s or "quad_perm" in s or "_dpp" in op or "wave_" in s
        I.perm = op.startswith("v_permlane")
        if op.startswith("v_cmp"):
            I.dst = regs_of(ops[0]); I.src = set().union(*[regs_of(o) for o in ops[1:]])
            if op.startswith("v_cmpx"): I.dst.add(("exec", 0))
        elif op.startswith("v_permlane") or op.startswith("v_swap"):
            I.dst = regs_of(ops[0]) | regs_of(ops[1]); I.src = set(I.dst)
        elif op.startswith(("v_add_co", "v_sub_co", "v_addc_co", "v_subb_co", "v_subrev_co", "v_div_scale", "v_mad_u64")):
            I.dst = regs_of(ops[0]) | regs_of(ops[1]); I.src = set().union(*[regs_of(o) for o in ops[2:]])
        else:
            I.dst = regs_of(ops[0]); I.src = set().union(*[regs_of(o.split(" op_sel")[0]) for o in ops[1:]]) if len(ops) > 1 else set()
            if op.startswith(("v_fmac", "v_dot2c", "v_mac", "v_pk_fmac")): I.src |= I.dst
            if op.startswith("v_cndmask") and len(ops) == 3: I.src.add(("vcc", 0))
        I.rdlane = op.startswith(("v_readlane", "v_readfirstlane"))
        return I
    if op.startswith(("buffer_", "global_", "flat_", "ds_")):
        I.kind = "mem"
        isload = ("load" in op or op.startswith("ds_read") or "permute" in op or "swizzle" in op) and " lds" not in (" " + s + " ").replace("lds ", " lds ")
        if re.search(r"\blds\b", s) and op.startswith(("buffer_load", "global_load")): isload = False
        allr = [regs_of(o.split(" offset")[0]) for o in ops]
        if isload:
            I.dst = allr[0]; I.src = set().union(*allr[1:]) if len(allr) > 1 else set()
        else:
            I.src = set().union(*allr) if allr else set()
        I.lds_dma = bool(re.search(r"\blds\b", s)) and op.startswith(("buffer_load", "global_load"))
        I.widestore = ("store" in op and ("x3" in op or "x4" in op)) and op.startswith(("buffer_", "global_", "flat_"))
        if I.widestore:
            I.sdata = allr[0] if op.startswith("buffer_") else allr[1]
        return I
    if op.startswith("s_"):
        I.kind = "salu"
        if ops:
            if op.startswith(("s_cmp", "s_cbranch", "s_branch", "s_waitcnt", "s_barrier", "s_bitcmp", "s_setprio", "s_sleep", "s_endpgm")):
                I.src = set().union(*[regs_of(o) for o in ops])
            else:
                I.dst = regs_of(ops[0]); I.src = set().union(*[regs_of(o) for o in ops[1:]]) if len(ops) > 1 else set()
                if "saveexec" in op: I.dst.add(("exec", 0))
        return I
    return I

def check_hazards(lines, name=""):
    ins = [(i, parse(l)) for i, l in enumerate(lines)]
    ins = [(i, x) for i, x in ins if x is not None]
    errs = []
    n = len(ins)
    WIN = 24
    for a in range(n):
        ia, A = ins[a]
        dist = 0
        for b in range(a + 1, min(n, a + WIN + 1)):
            ib, B = ins[b]
            need = 0
            vdstA = {r for r in A.dst if r[0] in "va"}
            sdstA = {r for r in A.dst if r[0] in ("s", "vcc")}
            if A.kind == "valu":
                if B.kind == "mfma" and vdstA & B.src: need = max(need, 2)
                if B.kind == "valu":
                    if A.trans and not B.trans and vdstA & (B.src | B.dst): need = max(need, 1)
                    if B.perm and vdstA & B.src: need = max(need, 2)
                    if B.dpp and vdstA & B.src: need = max(need, 2)
                    if B.rdlane and vdstA & B.src: need = max(need, 1)
                    if sdstA & B.src: need = max(need, 4 if B.rdlane or B.op.startswith("v_writelane") else 2)
                    if ("exec", 0) in A.dst and (B.dpp): need = max(need, 5)
                    if ("exec", 0) in A.dst and (B.rdlane or B.perm): need = max(need, 4)
                if B.kind == "mfma" and ("exec", 0) in A.dst: need = max(need, 4)
                if B.kind == "mem" and sdstA & B.src: need = max(need, 5)
                if A.trans and B.kind in ("mem",) and vdstA & B.src: need = max(need, 1)
            if A.kind == "mfma":
                p = A.passes
                tbl_ab = {2: 5, 4: 8, 8: 12, 16: 20}[p]
                tbl_ov = {2: 4, 4: 6, 8: 10, 16: 18}[p]
                if B.kind == "mfma":
                    if A.dst & B.srcAB: need = max(need, tbl_ab)
                    if A.dst & B.srcC:
                        if B.srcC == A.dst and B.passes == p: need = max(need, 2 if p == 2 else 0)
                        else: need = max(need, tbl_ov)
                    elif A.dst & B.dst:
                        need = max(need, tbl_ov if not (A.dst == B.dst and B.passes == p) else 0)
                if B.kind == "valu" and A.dst & (B.src | B.dst): need = max(need, tbl_ab)
                if B.kind == "mem" and A.dst & (B.src | B.dst): need = max(need, tbl_ab)
                if B.kind == "valu" and A.srcC & B.dst: need = max(need, {2: 1, 4: 3, 8: 7, 16: 15}[p])
            if A.kind == "mem" and getattr(A, "widestore", False):
                if B.kind == "valu" and A.sdata & B.dst: need = max(need, 2)
                elif B.kind in ("mem", "mfma") and A.sdata & B.dst: need = max(need, 1)
            if A.kind == "salu" and ("m0", 0) in A.dst and B.kind == "mem" and getattr(B, "lds_dma", False):
                need = max(need, 1)
            if need > dist:
                errs.append(f"{name}: line {ia}: '{A.text}' -> line {ib}: '{B.text}' needs {need} has {dist}")
            dist += B.ws
            if dist >= 21: break
    return errs
```

```python
from asmlib import *
import struct
def f32bits(x): return struct.unpack("<I", struct.pack("<f", x))[0]

KVIMG = 0x0
KMAX = 0x2A000
GATE = 0x2B000
KVP  = 0x30000
QB   = 0x200000
PHIQ = 0x480000
OC   = 0x980000
WT   = 0xE80000
WS_SIZE = 0x1100000
TILE = 2624
LOG2E = 1.4426950408889634
QSCALE = (20 ** -0.5) * LOG2E

STG = 39936
XOFF, WOFF, EOFF = 0, 16384, 36864
PHIB = 4 * STG
PKRS, VRS = 352, 224
VB = 128 * PKRS

def srd(a, d, lo, hi, size):
    a.e(f"s_mov_b32 s{d}, s{lo}\ns_mov_b32 s{d+1}, s{hi}\ns_mov_b32 s{d+2}, {size}\ns_mov_b32 s{d+3}, 0x20000")

def k1():
    a = Asm()
    a.e("""
    s_cmp_ge_u32 s2, 256
    s_cbranch_scc1 K1_END
    s_load_dwordx4 s[4:7], s[0:1], 0
    s_load_dwordx2 s[8:9], s[0:1], 16
    s_load_dwordx2 s[10:11], s[0:1], 40
    s_load_dwordx4 s[12:15], s[0:1], 48
    s_load_dwordx2 s[16:17], s[0:1], 96
    v_lshrrev_b32 v2, 6, v0
    v_and_b32 v1, 63, v0
    s_and_b32 s3, s2, 7
    v_readfirstlane_b32 s20, v2
    s_lshr_b32 s18, s2, 3
    s_and_b32 s21, s3, 1
    s_lshl_b32 s21, s21, 3
    s_and_b32 s19, s18, 7
    s_add_u32 s21, s21, s19
    s_lshr_b32 s22, s3, 1
    s_lshl_b32 s22, s22, 2
    s_lshr_b32 s19, s18, 3
    s_add_u32 s22, s22, s19
    s_and_b32 s23, s22, 7
    s_lshr_b32 s24, s22, 3
    s_and_b32 s25, s23, 3
    s_lshr_b32 s26, s23, 2
    s_mul_i32 s26, s26, s24
    s_cmp_lt_u32 s20, 4
    s_cbranch_scc1 K1_COMPUTE
    """)
    a.c("---- loader ----")
    a.e("""
    s_sub_u32 s27, s20, 4
    s_lshr_b32 s48, s27, 1
    s_and_b32 s49, s27, 1
    s_and_b32 s50, s24, s48
    s_mul_i32 s51, s23, 160
    s_mul_i32 s52, s48, 1280
    s_add_u32 s52, s52, 1280
    s_cmp_eq_u32 s24, 0
    s_cselect_b32 s52, s52, 0
    s_add_u32 s51, s51, s52
    v_lshrrev_b32 v2, 3, v1
    v_and_b32 v3, 7, v1
    v_lshrrev_b32 v4, 4, v1
    v_xor_b32 v5, v3, v4
    v_xor_b32 v6, 4, v5
    v_mul_u32_u24 v2, 1280, v2
    s_mul_i32 s53, s27, 40960
    v_add_u32 v2, s53, v2
    v_lshl_add_u32 v8, v5, 4, v2
    v_lshl_add_u32 v9, v6, 4, v2
    v_add_u32 v10, 18432, v8
    v_add_u32 v11, 27648, v9
    v_add_u32 v9, 9216, v9
    s_waitcnt lgkmcnt(0)
    """)
    a.e("""
    s_mul_i32 s53, s21, 163840
    s_add_u32 s28, s4, s53
    s_addc_u32 s29, s5, 0
    s_mov_b32 s30, 163840
    s_mov_b32 s31, 0x20000
    s_cmp_eq_u32 s50, 1
    s_cselect_b32 s32, s10, s6
    s_cselect_b32 s33, s11, s7
    s_movk_i32 s54, 3840
    s_cselect_b32 s54, 1280, s54
    s_mov_b32 s34, 2457600
    s_cselect_b32 s34, 819200, s34
    s_add_u32 s32, s32, s51
    s_addc_u32 s33, s33, 0
    s_sub_u32 s34, s34, s51
    s_mov_b32 s35, 0x20000
    s_cmp_lt_u32 s25, 2
    s_cselect_b32 s36, s12, s14
    s_cselect_b32 s37, s13, s15
    s_mov_b32 s38, 25600
    s_mov_b32 s39, 0x20000
    s_mul_i32 s53, s23, 3200
    s_add_u32 s40, s8, s53
    s_addc_u32 s41, s9, 0
    s_mov_b32 s42, 3200
    s_mov_b32 s43, 0x20000
    s_lshl_b32 s55, s54, 6
    """)
    a.e("s_mul_i32 s53, s49, 320\ns_movk_i32 s56, 6554")
    for q in range(5):
        a.e(f"""
        v_add_u32 v2, s53, v1
        v_add_u32 v2, {q*64}, v2
        v_mul_u32_u24 v3, s56, v2
        v_lshrrev_b32 v3, 16, v3
        v_mul_u32_u24 v4, 10, v3
        v_sub_u32 v4, v2, v4
        v_and_b32 v5, 0x33, v3
        v_and_b32 v6, 4, v3
        v_lshl_or_b32 v5, v6, 1, v5
        v_and_b32 v6, 8, v3
        v_lshrrev_b32 v6, 1, v6
        v_or_b32 v5, v5, v6
        v_mul_u32_u24 v5, s54, v5
        v_lshl_add_u32 v{12+q}, v4, 4, v5
        """)
        if 0 < q < 4:
            a.e(f"v_subrev_u32 v{12+q}, {q*1024}, v{12+q}")
    a.e("""
    s_lshl_b32 s53, s27, 10
    v_lshlrev_b32 v17, 4, v1
    v_add_u32 v17, s53, v17
    s_lshl_b32 s57, s27, 12
    s_mul_i32 s58, s48, 10240
    s_mul_i32 s59, s49, 5120
    s_add_u32 s58, s58, s59
    s_add_u32 s58, s58, 16384
    s_add_u32 s59, s53, 36864
    s_cmp_lt_u32 s27, 3
    s_cselect_b32 s60, s24, 0
    s_mov_b32 s61, 0
    s_mov_b32 s62, 0
    s_mov_b32 s63, 0
    s_mov_b32 s64, 0
    """)
    a.e(f"""
    s_add_u32 m0, s53, {PHIB}
    s_nop 0
    buffer_load_dwordx4 v17, s[40:43], 0 offen lds
    """)
    def issue(tag):
        a.e(f"""
        s_cmp_eq_u32 s60, 0
        s_cbranch_scc1 K1_NOE_{tag}
        s_add_u32 m0, s59, s64
        s_nop 0
        buffer_load_dwordx4 v17, s[36:39], s63 offen lds
        """)
        a.label(f"K1_NOE_{tag}")
        a.e("s_add_u32 m0, s57, s64\ns_nop 0")
        for q in range(4):
            a.e(f"buffer_load_dwordx4 v{8+q}, s[28:31], s61 offen offset:{q*1024} lds")
        a.e("s_add_u32 m0, s58, s64\ns_nop 0")
        for q in range(4):
            a.e(f"buffer_load_dwordx4 v{12+q}, s[32:35], s62 offen offset:{q*1024} lds")
        a.e("s_add_u32 m0, m0, 4096\ns_nop 0")
        a.e("buffer_load_dwordx4 v16, s[32:35], s62 offen lds")
        a.e(f"""
        s_add_u32 s61, s61, 128
        s_add_u32 s62, s62, s55
        s_add_u32 s63, s63, 2560
        s_add_u32 s64, s64, {STG}
        s_cmp_eq_u32 s64, {4*STG}
        s_cselect_b32 s64, 0, s64
        """)
    a.e("s_mov_b32 s65, 0")
    a.label("K1_LD_A")
    issue("A")
    a.e("""
    s_add_u32 s65, s65, 1
    s_cmp_lt_u32 s65, 4
    s_cbranch_scc1 K1_LD_A
    s_waitcnt vmcnt(27)
    s_barrier
    s_mov_b32 s65, 0
    """)
    a.label("K1_LD_B")
    a.e("s_waitcnt vmcnt(18)\ns_barrier")
    issue("B")
    a.e("""
    s_add_u32 s65, s65, 1
    s_cmp_lt_u32 s65, 6
    s_cbranch_scc1 K1_LD_B
    s_waitcnt vmcnt(18)
    s_barrier
    s_waitcnt vmcnt(9)
    s_barrier
    s_waitcnt vmcnt(0)
    s_barrier
    s_endpgm
    """)
    ACC = 16
    def acc(tt, seg, t=0): return ACC + ((tt * 2 + seg) * 5 + t) * 4
    ACCE = 96
    WF = [100, 140]; XF = [180, 188]; EF = [196, 200]
    a.label("K1_COMPUTE")
    a.e("""
    v_and_b32 v14, 15, v1
    v_lshrrev_b32 v15, 4, v1
    s_lshl_b32 s48, s20, 5
    s_lshl_b32 s49, s26, 4
    s_add_u32 s50, s48, s49
    s_sub_u32 s51, s48, s49
    s_add_u32 s51, s51, 16
    v_lshrrev_b32 v8, 1, v14
    v_xor_b32 v8, v8, v15
    v_xor_b32 v9, 4, v8
    v_add_u32 v10, s50, v14
    v_add_u32 v11, s51, v14
    v_lshlrev_b32 v10, 7, v10
    v_lshlrev_b32 v11, 7, v11
    v_lshl_add_u32 v2, v8, 4, v10
    v_lshl_add_u32 v3, v9, 4, v10
    v_lshl_add_u32 v4, v8, 4, v11
    v_lshl_add_u32 v5, v9, 4, v11
    v_lshrrev_b32 v8, 2, v14
    v_and_b32 v9, 3, v1
    v_lshrrev_b32 v10, 1, v15
    v_and_b32 v11, 1, v15
    v_lshlrev_b32 v10, 4, v10
    v_lshl_add_u32 v10, v11, 2, v10
    v_add_u32 v10, v10, v8
    v_mul_u32_u24 v10, 160, v10
    v_mul_u32_u24 v11, 40, v9
    v_add_u32 v6, v10, v11
    v_lshl_add_u32 v10, v15, 3, v8
    v_mul_u32_u24 v10, 40, v10
    v_lshlrev_b32 v11, 3, v9
    s_and_b32 s52, s25, 1
    s_cmp_eq_u32 s52, 1
    s_cselect_b64 vcc, -1, 0
    v_mov_b32 v12, 32
    s_nop 1
    v_cndmask_b32 v11, v11, v12, vcc
    v_add_u32 v7, v10, v11
    """)
    for i in range(ACC, ACCE + 4):
        a.e(f"v_mov_b32 v{i}, 0")
    a.e("s_waitcnt lgkmcnt(0)")
    srd(a, 44, 16, 17, WS_SIZE)
    a.e("""
    s_mov_b32 s53, 0
    s_mov_b32 s54, 0
    """)
    def setaddr():
        for i in range(6):
            a.e(f"v_add_u32 v{8+i}, s53, v{2+i}")
    def reads(ks, buf, extra):
        r = []
        for tt in range(2):
            r.append(f"ds_read_b128 {vr(XF[buf]+tt*4,4)}, v{8+tt*2+ks}")
        if extra:
            for b in range(2):
                r.append(f"ds_read_b64_tr_b16 {vr(EF[buf]+2*b,2)}, v13 offset:{EOFF + (32*ks+4*b)*40}")
        for seg in range(2):
            for t in range(5):
                for b in range(2):
                    off = WOFF + seg * 10240 + (32 * ks + 8 * b) * 160 + t * 8
                    r.append(f"ds_read_b64_tr_b16 {vr(WF[buf]+(seg*5+t)*4+2*b,2)}, v12 offset:{off}")
        return r
    def mfmas(buf, extra):
        m = []
        for seg in range(2):
            for t in range(5):
                for tt in range(2):
                    d = acc(tt, seg, t)
                    m.append(f"v_mfma_f32_16x16x32_bf16 {vr(d,4)}, {vr(WF[buf]+(seg*5+t)*4,4)}, {vr(XF[buf]+tt*4,4)}, {vr(d,4)}")
        if extra:
            m.append(f"v_mfma_f32_16x16x32_bf16 {vr(ACCE,4)}, {vr(EF[buf],4)}, {vr(XF[buf],4)}, {vr(ACCE,4)}")
        return m
    def interleave(m, r):
        ri = 0
        for x in m:
            a.e(x)
            for _ in range(2):
                if ri < len(r):
                    a.e(r[ri]); ri += 1
        while ri < len(r):
            a.e(r[ri]); ri += 1
    def mainloop(extra, tag):
        a.e("s_barrier")
        setaddr()
        for x in reads(0, 0, extra): a.e(x)
        a.label(f"K1_LOOP_{tag}")
        a.e("s_waitcnt lgkmcnt(0)")
        interleave(mfmas(0, extra), reads(1, 1, extra))
        a.e(f"""
        s_add_u32 s53, s53, {STG}
        s_cmp_eq_u32 s53, {4*STG}
        s_cselect_b32 s53, 0, s53
        s_waitcnt lgkmcnt(0)
        s_barrier
        """)
        setaddr()
        interleave(mfmas(1, extra), reads(0, 0, extra))
        a.e(f"""
        s_add_u32 s54, s54, 1
        s_cmp_lt_u32 s54, 10
        s_cbranch_scc1 K1_LOOP_{tag}
        s_waitcnt lgkmcnt(0)
        """)
    a.e("s_cmp_eq_u32 s24, 0\ns_cbranch_scc1 K1_KVMAIN")
    mainloop(True, "Q")
    a.e("s_branch K1_EPI")
    a.label("K1_KVMAIN")
    mainloop(False, "KV")
    a.label("K1_EPI")
    BOP = [100, 112]; AF = [124, 136]
    EP, EN, PK = 148, 168, 188
    a.e(f"""
    v_lshrrev_b32 v8, 2, v14
    v_and_b32 v9, 3, v1
    v_mul_u32_u24 v10, 800, v15
    v_mul_u32_u24 v11, 40, v8
    v_add_u32 v10, v10, v11
    v_add_u32 v10, {PHIB}, v10
    v_mov_b32 v11, {PHIB + 3200}
    v_cmp_eq_u32 vcc, v9, v15
    s_nop 1
    v_cndmask_b32 v2, v11, v10, vcc
    v_mov_b32 v{AF[0]+10}, 0
    v_mov_b32 v{AF[0]+11}, 0
    v_mov_b32 v{AF[1]+10}, 0
    v_mov_b32 v{AF[1]+11}, 0
    """)
    def aread(tp, buf):
        for u in range(3):
            for b in range(2 if u < 2 else 1):
                a.e(f"ds_read_b64_tr_b16 {vr(AF[buf]+u*4+2*b,2)}, v2 offset:{(8*u+4*b)*40 + tp*8}")
    aread(0, 0)
    aread(1, 1)
    for tt in range(2):
        for j in range(10):
            a.e(f"v_cvt_pk_bf16_f32 v{BOP[tt]+j}, v{acc(tt,0)+2*j}, v{acc(tt,0)+2*j+1}")
        a.e(f"v_mov_b32 v{BOP[tt]+10}, 0\nv_mov_b32 v{BOP[tt]+11}, 0")
    for tp in range(5):
        buf = tp & 1
        a.e(f"s_waitcnt lgkmcnt({5 if tp < 4 else 0})")
        for u in range(3):
            for tt in range(2):
                d = acc(tt, 0, tp)
                cc = "0" if u == 0 else vr(d, 4)
                a.e(f"v_mfma_f32_16x16x32_bf16 {vr(d,4)}, {vr(AF[buf]+u*4,4)}, {vr(BOP[tt]+u*4,4)}, {cc}")
        if tp + 2 < 5:
            aread(tp + 2, buf)
    a.e(f"""
    s_lshl_b32 s52, s21, 7
    s_add_u32 s55, s52, s50
    s_add_u32 s56, s52, s51
    v_add_u32 v3, s55, v14
    v_add_u32 v4, s56, v14
    s_lshl_b32 s57, s23, 2
    v_add_u32 v5, s57, v15
    v_lshlrev_b32 v5, 11, v5
    s_mov_b32 s60, {f32bits(LOG2E)}
    s_mov_b32 s61, {f32bits(LOG2E)}
    s_mov_b32 s62, {f32bits(QSCALE)}
    s_mov_b32 s63, {f32bits(QSCALE)}
    s_cmp_eq_u32 s24, 0
    s_cbranch_scc1 K1_EPI_KV1
    """)
    for tt in range(2):
        P = EP + tt * 10 + (tt * 0)
        P = [EP, EN][tt]
        for j in range(10):
            s = acc(tt, 1) + 2 * j
            a.e(f"v_pk_mul_f32 {vr(s,2)}, {vr(s,2)}, s[62:63]")
        for j in range(10):
            s = acc(tt, 1) + 2 * j
            a.e(f"v_cvt_pk_bf16_f32 v{P+j}, v{s}, v{s+1}")
        a.e(f"""
        v_add_u32 v6, v5, v{3+tt}
        v_mul_u32_u24 v6, 40, v6
        v_add_u32 v{6+tt}, {QB}, v6
        buffer_store_dwordx4 {vr(P,4)}, v{6+tt}, s[44:47], 0 offen
        buffer_store_dwordx4 {vr(P+4,4)}, v{6+tt}, s[44:47], 0 offen offset:16
        buffer_store_dwordx2 {vr(P+8,2)}, v{6+tt}, s[44:47], 0 offen offset:32
        """)
    a.e(f"""
    v_cvt_pk_bf16_f32 v8, v{ACCE}, v{ACCE+1}
    v_cvt_pk_bf16_f32 v9, v{ACCE+2}, v{ACCE+3}
    s_lshl_b32 s52, s21, 2
    s_add_u32 s52, s52, s20
    s_mul_i32 s57, s52, {TILE}
    s_cmp_ge_u32 s25, 2
    s_cbranch_scc1 K1_EX_V
    v_mov_b32 v10, 0
    v_dot2_f32_bf16 v10, v8, v8, v10
    v_dot2_f32_bf16 v10, v9, v9, v10
    v_add_u32 v11, s49, v14
    s_cmp_eq_u32 s25, 1
    s_cbranch_scc1 K1_EX_K1
    v_lshrrev_b32 v12, 1, v15
    v_lshlrev_b32 v12, 9, v12
    v_lshl_add_u32 v12, v11, 4, v12
    v_and_b32 v13, 1, v15
    v_lshl_add_u32 v12, v13, 3, v12
    buffer_store_dwordx2 v[8:9], v12, s[44:47], s57 offen
    v_mov_b32 v11, v10
    s_nop 1
    v_permlane32_swap_b32 v10, v11
    s_nop 1
    v_add_f32 v10, v10, v11
    v_mov_b32 v11, v10
    s_nop 1
    v_permlane16_swap_b32 v10, v11
    s_nop 1
    v_add_f32 v10, v10, v11
    s_branch K1_EX_KN
    """)
    a.label("K1_EX_K1")
    a.e(f"""
    v_lshlrev_b32 v12, 3, v11
    v_cmp_gt_u32 vcc, 16, v1
    s_and_saveexec_b64 s[58:59], vcc
    buffer_store_dwordx2 v[8:9], v12, s[44:47], s57 offen offset:1024
    s_mov_b64 exec, s[58:59]
    """)
    a.label("K1_EX_KN")
    a.e("s_nop 1")
    for sh in (8, 4, 2, 1):
        a.e(f"v_max_f32_dpp v10, v10, v10 row_ror:{sh} row_mask:0xf bank_mask:0xf\ns_nop 1")
    a.e(f"""
    s_lshl_b32 s52, s52, 1
    s_add_u32 s52, s52, s26
    s_lshl_b32 s57, s25, 7
    s_add_u32 s52, s52, s57
    s_lshl_b32 s52, s52, 2
    s_add_u32 s52, s52, {KMAX}
    v_mov_b32 v12, s52
    v_cmp_eq_u32 vcc, 0, v1
    s_and_saveexec_b64 s[58:59], vcc
    buffer_store_dword v10, v12, s[44:47], 0 offen
    s_mov_b64 exec, s[58:59]
    s_branch K1_EPI_PHI
    """)
    a.label("K1_EX_V")
    a.e(f"""
    s_mul_i32 s52, s26, 672
    s_add_u32 s57, s57, s52
    s_add_u32 s57, s57, 1280
    v_lshrrev_b32 v10, 3, v14
    v_mul_u32_u24 v10, 21, v10
    v_lshl_add_u32 v10, v15, 2, v10
    v_and_b32 v11, 7, v14
    v_lshlrev_b32 v11, 1, v11
    v_lshl_add_u32 v12, v10, 4, v11
    s_cmp_eq_u32 s25, 3
    s_cbranch_scc1 K1_EX_V1
    buffer_store_short v8, v12, s[44:47], s57 offen
    buffer_store_short_d16_hi v8, v12, s[44:47], s57 offen offset:16
    buffer_store_short v9, v12, s[44:47], s57 offen offset:32
    buffer_store_short_d16_hi v9, v12, s[44:47], s57 offen offset:48
    s_branch K1_EPI_PHI
    """)
    a.label("K1_EX_V1")
    a.e(f"""
    v_mov_b32 v13, 0x3f803f80
    v_cmp_eq_u32 vcc, 1, v15
    s_nop 1
    v_cndmask_b32 v13, v8, v13, vcc
    v_cmp_gt_u32 vcc, 32, v1
    s_and_saveexec_b64 s[58:59], vcc
    buffer_store_short v13, v12, s[44:47], s57 offen offset:256
    s_mov_b64 exec, s[58:59]
    v_cmp_gt_u32 vcc, 16, v1
    s_and_saveexec_b64 s[58:59], vcc
    buffer_store_short_d16_hi v8, v12, s[44:47], s57 offen offset:272
    buffer_store_short v9, v12, s[44:47], s57 offen offset:288
    buffer_store_short_d16_hi v9, v12, s[44:47], s57 offen offset:304
    s_mov_b64 exec, s[58:59]
    s_branch K1_EPI_PHI
    """)
    a.label("K1_EPI_KV1")
    for tt in range(2):
        P = [EP, EN][tt]
        for j in range(10):
            s = acc(tt, 1) + 2 * j
            a.e(f"v_cvt_pk_bf16_f32 v{P+j}, v{s}, v{s+1}")
        a.e(f"""
        v_mov_b32 v{P+10}, 0x3f80
        v_mov_b32 v{P+11}, 0
        v_add_u32 v6, s{50+tt}, v14
        v_mul_u32_u24 v6, {VRS}, v6
        v_mul_u32_u24 v7, 48, v15
        v_add_u32 v6, v6, v7
        ds_write_b128 v6, {vr(P,4)} offset:{VB}
        ds_write_b128 v6, {vr(P+4,4)} offset:{VB+16}
        ds_write_b128 v6, {vr(P+8,4)} offset:{VB+32}
        """)
    a.label("K1_EPI_PHI")
    a.e("s_nop 7")
    for tt in range(2):
        p = acc(tt, 0)
        a.e(f"v_max3_f32 v8, v{p}, v{p+1}, v{p+2}\nv_min3_f32 v10, v{p}, v{p+1}, v{p+2}")
        for i in range(3, 19, 2):
            a.e(f"v_max3_f32 v8, v8, v{p+i}, v{p+i+1}\nv_min3_f32 v10, v10, v{p+i}, v{p+i+1}")
        a.e(f"v_max_f32 v8, v8, v{p+19}\nv_min_f32 v10, v10, v{p+19}")
        a.e(f"v_mul_f32 v8, 0x{f32bits(-LOG2E):x}, v8\nv_mul_f32 v10, s60, v10")
        for j in range(10):
            a.e(f"v_pk_fma_f32 {vr(EP+2*j,2)}, {vr(p+2*j,2)}, s[60:61], v[8:9] op_sel_hi:[1,1,0]")
            a.e(f"v_pk_fma_f32 {vr(EN+2*j,2)}, {vr(p+2*j,2)}, s[60:61], v[10:11] op_sel_hi:[1,1,0] neg_lo:[1,0,0] neg_hi:[1,0,0]")
        for i in range(20):
            a.e(f"v_exp_f32 v{EP+i}, v{EP+i}")
        for i in range(20):
            a.e(f"v_exp_f32 v{EN+i}, v{EN+i}")
        a.e(f"v_pk_add_f32 v[8:9], {vr(EP,2)}, {vr(EP+2,2)}\nv_pk_add_f32 v[10:11], {vr(EN,2)}, {vr(EN+2,2)}")
        for j in range(2, 10):
            a.e(f"v_pk_add_f32 v[8:9], v[8:9], {vr(EP+2*j,2)}\nv_pk_add_f32 v[10:11], v[10:11], {vr(EN+2*j,2)}")
        a.e("v_add_f32 v8, v8, v9\nv_add_f32 v10, v10, v11\nv_rcp_f32 v8, v8\nv_rcp_f32 v10, v10\ns_nop 0")
        for j in range(10):
            a.e(f"v_pk_mul_f32 {vr(EP+2*j,2)}, {vr(EP+2*j,2)}, v[8:9] op_sel_hi:[1,0]")
            a.e(f"v_pk_mul_f32 {vr(EN+2*j,2)}, {vr(EN+2*j,2)}, v[10:11] op_sel_hi:[1,0]")
        PKt = PK + tt * 20
        for j in range(10):
            a.e(f"v_cvt_pk_bf16_f32 v{PKt+j}, v{EP+2*j}, v{EP+2*j+1}")
        for j in range(10):
            a.e(f"v_cvt_pk_bf16_f32 v{PKt+10+j}, v{EN+2*j}, v{EN+2*j+1}")
        a.e(f"s_cmp_eq_u32 s24, 0\ns_cbranch_scc1 K1_PHI_KV{tt}")
        a.e(f"""
        v_add_u32 v6, v5, v{3+tt}
        v_mul_u32_u24 v6, 80, v6
        v_add_u32 v{6+tt}, {PHIQ}, v6
        """)
        for i in range(5):
            a.e(f"buffer_store_dwordx4 {vr(PKt+4*i,4)}, v{6+tt}, s[44:47], 0 offen offset:{16*i}")
        if tt == 0:
            a.e(f"s_branch K1_PHI_NEXT{tt}")
        else:
            a.e("s_endpgm")
        a.label(f"K1_PHI_KV{tt}")
        a.e(f"""
        v_add_u32 v6, s{50+tt}, v14
        v_mul_u32_u24 v6, {PKRS}, v6
        v_mul_u32_u24 v7, 80, v15
        v_add_u32 v{6+tt}, v6, v7
        """)
        for i in range(5):
            a.e(f"ds_write_b128 v{6+tt}, {vr(PKt+4*i,4)} offset:{16*i}")
        if tt == 0:
            a.label(f"K1_PHI_NEXT{tt}")
    a.e(f"""
    v_lshrrev_b32 v8, 2, v14
    v_and_b32 v9, 3, v1
    v_lshl_add_u32 v8, v15, 2, v8
    v_lshlrev_b32 v9, 3, v9
    s_mul_i32 s52, s20, 80
    s_mul_i32 s53, s20, 48
    s_add_u32 s53, s53, {VB}
    v_mul_u32_u24 v10, {PKRS}, v8
    v_add3_u32 v10, v10, v9, s52
    v_mul_u32_u24 v11, {VRS}, v8
    v_add3_u32 v11, v11, v9, s53
    s_waitcnt lgkmcnt(0)
    s_barrier
    """)
    KA = 100
    KB = 148
    KD = 16
    for ks in range(4):
        for T in range(3):
            for b in range(2):
                a.e(f"ds_read_b64_tr_b16 {vr(KA+(ks*3+T)*4+2*b,2)}, v10 offset:{(32*ks+16*b)*PKRS + T*32}")
        for ct in range(2):
            for b in range(2):
                a.e(f"ds_read_b64_tr_b16 {vr(KB+(ks*2+ct)*4+2*b,2)}, v11 offset:{(32*ks+16*b)*VRS + ct*32}")
        if ks >= 1:
            a.e("s_waitcnt lgkmcnt(10)")
            k = ks - 1
            for T in range(3):
                for ct in range(2):
                    d = KD + (T * 2 + ct) * 4
                    cc = "0" if k == 0 else vr(d, 4)
                    a.e(f"v_mfma_f32_16x16x32_bf16 {vr(d,4)}, {vr(KA+(k*3+T)*4,4)}, {vr(KB+(k*2+ct)*4,4)}, {cc}")
    a.e("s_waitcnt lgkmcnt(0)")
    k = 3
    for T in range(3):
        for ct in range(2):
            d = KD + (T * 2 + ct) * 4
            a.e(f"v_mfma_f32_16x16x32_bf16 {vr(d,4)}, {vr(KA+(k*3+T)*4,4)}, {vr(KB+(k*2+ct)*4,4)}, {vr(d,4)}")
    a.e(f"""
    s_lshl_b32 s52, s21, 5
    s_lshl_b32 s53, s23, 2
    s_add_u32 s52, s52, s53
    s_add_u32 s52, s52, s20
    s_mul_i32 s52, s52, 3360
    s_add_u32 s52, s52, {KVP}
    v_mul_u32_u24 v8, 160, v14
    v_lshl_add_u32 v8, v15, 4, v8
    v_cmp_gt_u32 s[56:57], 5, v14
    v_cmp_gt_u32 s[58:59], 32, v1
    s_nop 3
    s_and_b64 s[60:61], s[56:57], s[58:59]
    """)
    def st(T, ct):
        d = KD + (T * 2 + ct) * 4
        a.e(f"buffer_store_dwordx4 {vr(d,4)}, v8, s[44:47], s52 offen offset:{ct*16*160 + T*64}")
    st(0, 0); st(1, 0)
    a.e("s_mov_b64 exec, s[58:59]"); st(2, 0)
    a.e("s_mov_b64 exec, s[56:57]"); st(0, 1); st(1, 1)
    a.e("s_mov_b64 exec, s[60:61]"); st(2, 1)
    a.label("K1_END")
    a.e("s_endpgm")
    return a
```

```python
from asmlib import *
from k1 import *

CHUNK = 16 * TILE
SCR = 3 * CHUNK
K2_LDS = SCR + 6720 + 64
THR = 2.0 ** -60

def k2():
    a = Asm()
    a.e("""
    s_cmp_ge_u32 s2, 256
    s_cbranch_scc1 K2_END
    s_load_dwordx2 s[4:5], s[0:1], 0
    s_load_dwordx2 s[6:7], s[0:1], 24
    s_load_dwordx4 s[8:11], s[0:1], 64
    s_load_dwordx2 s[12:13], s[0:1], 96
    v_lshrrev_b32 v2, 6, v0
    v_and_b32 v1, 63, v0
    s_and_b32 s3, s2, 7
    v_readfirstlane_b32 s20, v2
    s_lshr_b32 s18, s2, 3
    s_and_b32 s19, s18, 3
    s_lshl_b32 s21, s3, 2
    s_add_u32 s21, s21, s19
    s_lshr_b32 s22, s18, 2
    v_and_b32 v2, 31, v1
    v_lshrrev_b32 v3, 5, v1
    s_lshl_b32 s23, s22, 8
    s_lshl_b32 s24, s20, 5
    s_add_u32 s23, s23, s24
    v_add_u32 v4, s23, v2
    s_lshl_b32 s24, s21, 11
    v_add_u32 v5, s24, v4
    s_waitcnt lgkmcnt(0)
    """)
    srd(a, 28, 12, 13, WS_SIZE)
    srd(a, 32, 4, 5, 2621440)
    srd(a, 36, 10, 11, 1280)
    a.e("""
    s_cmp_lt_u32 s20, 4
    s_cselect_b32 s40, s6, s8
    s_cselect_b32 s41, s7, s9
    s_mov_b32 s42, 819200
    s_mov_b32 s43, 0x20000
    """)
    Q1, Q2 = 16, 20
    IDX = 22
    AK1, AK2, AV = 23, 24, 25
    NK1, NK2, NV = 26, 27, 28
    VDMA = 29
    CM = 32
    S = [48, 64]
    O = 80
    KF1, KF2 = 96, 100
    VLO, VHI = 104, 108
    PHQ = 112
    T = 128
    a.e(f"""
    v_mul_u32_u24 v6, 40, v5
    v_add_u32 v6, {QB}, v6
    v_lshl_add_u32 v7, v3, 4, v6
    buffer_load_dwordx4 {vr(Q1,4)}, v7, s[28:31], 0 offen
    buffer_load_dwordx2 {vr(Q2,2)}, v6, s[28:31], 0 offen offset:32
    v_lshlrev_b32 v8, 3, v1
    v_add_u32 v8, {KMAX}, v8
    buffer_load_dwordx2 v[10:11], v8, s[28:31], 0 offen
    buffer_load_dwordx2 v[12:13], v8, s[28:31], 0 offen offset:512
    """)
    KVR = T
    a.e(f"""
    v_cmp_le_u32 vcc, 210, v0
    v_mov_b32 v14, 0
    v_mov_b32 v15, 210
    v_cndmask_b32 v14, v14, v15, vcc
    v_sub_u32 v14, v0, v14
    v_mov_b32 v15, 0
    v_mov_b32 v9, {8*32*3360}
    v_cndmask_b32 v15, v15, v9, vcc
    v_lshl_add_u32 v9, v14, 4, v15
    s_mul_i32 s24, s21, 3360
    s_add_u32 s24, s24, {KVP}
    v_cmp_gt_u32 vcc, 420, v0
    s_and_saveexec_b64 s[44:45], vcc
    s_cbranch_execz K2_NOKV
    """)
    for i in range(8):
        a.e(f"buffer_load_dwordx4 {vr(KVR+4*i,4)}, v9, s[28:31], s24 offen")
        if i < 7: a.e(f"s_add_u32 s24, s24, {32*3360}")
    a.label("K2_NOKV")
    a.e("s_mov_b64 exec, s[44:45]")
    WOR = T + 32
    a.e(f"""
    v_and_b32 v8, 255, v0
    v_mul_u32_u24 v9, 820, v8
    v_lshrrev_b32 v9, 16, v9
    v_mul_u32_u24 v15, 80, v9
    v_sub_u32 v8, v8, v15
    v_lshlrev_b32 v15, 2, v9
    v_cmp_eq_u32 vcc, 2, v9
    v_mov_b32 v30, 16
    s_mul_i32 s24, s21, 20
    v_cndmask_b32 v15, v15, v30, vcc
    v_add_u32 v15, s24, v15
    v_mul_u32_u24 v15, 1280, v15
    s_mul_i32 s25, s22, 160
    v_lshl_add_u32 v15, v8, 1, v15
    v_add_u32 v30, 10240, v15
    """)
    for j in range(4):
        a.e(f"buffer_load_ushort v{WOR+j}, v15, s[40:43], s25 offen offset:{j*1280}")
    for j in range(4):
        a.e(f"buffer_load_ushort v{WOR+4+j}, v30, s[40:43], s25 offen offset:{j*1280}")
    GX = T + 40
    a.e(f"""
    s_lshl_b32 s24, s22, 8
    s_lshl_b32 s25, s21, 3
    s_add_u32 s24, s24, s25
    s_add_u32 s26, s24, s20
    s_mul_i32 s24, s26, 1280
    v_mul_u32_u24 v31, 20, v1
    buffer_load_dwordx4 {vr(GX,4)}, v31, s[32:35], s24 offen
    buffer_load_dword v{GX+4}, v31, s[32:35], s24 offen offset:16
    buffer_load_dwordx4 {vr(GX+6,4)}, v31, s[36:39], 0 offen
    buffer_load_dword v{GX+10}, v31, s[36:39], 0 offen offset:16
    """)
    a.e(f"""
    v_mul_u32_u24 v6, 80, v5
    v_add_u32 v6, {PHIQ}, v6
    v_lshl_add_u32 v7, v3, 4, v6
    buffer_load_dwordx4 {vr(PHQ,4)}, v7, s[28:31], 0 offen
    buffer_load_dwordx4 {vr(PHQ+4,4)}, v7, s[28:31], 0 offen offset:32
    buffer_load_dwordx4 {vr(PHQ+8,4)}, v6, s[28:31], 0 offen offset:64
    """)
    a.e(f"""
    s_lshl_b32 s27, s20, 10
    v_lshlrev_b32 v{VDMA}, 4, v1
    v_add_u32 v{VDMA}, s27, v{VDMA}
    """)
    def dma(c_mem_sgpr_or_imm, slot_base, tag):
        a.e(f"s_cmp_lg_u32 s20, 0\ns_cbranch_scc1 K2_DMA_{tag}")
        a.e(f"s_mov_b32 m0, {slot_base + 40*1024}\ns_mov_b32 s24, {c_mem_sgpr_or_imm + 40*1024}")
        a.e(f"buffer_load_dwordx4 v{VDMA}, s[28:31], s24 offen lds")
        a.label(f"K2_DMA_{tag}")
        for q in range(5):
            a.e(f"s_add_u32 m0, s27, {slot_base + q*8192}\ns_mov_b32 s24, {c_mem_sgpr_or_imm + q*8192}")
            a.e(f"buffer_load_dwordx4 v{VDMA}, s[28:31], s24 offen lds")
    for c in range(3):
        dma(KVIMG + c * CHUNK, c * CHUNK, f"P{c}")
    a.e(f"""
    s_waitcnt vmcnt(30)
    v_cmp_eq_u32 vcc, 0, v3
    v_mov_b32 v6, 0
    v_max_f32 v10, v10, v11
    v_max_f32 v12, v12, v13
    v_cndmask_b32 v{Q2}, v6, v{Q2}, vcc
    v_cndmask_b32 v{Q2+1}, v6, v{Q2+1}, vcc
    """)
    for i in range(4):
        a.e(f"v_dot2_f32_bf16 v6, v{Q1+i}, v{Q1+i}, v6")
    for i in range(2):
        a.e(f"v_dot2_f32_bf16 v6, v{Q2+i}, v{Q2+i}, v6")
    for sh in (8, 4, 2, 1):
        a.e(f"v_max_f32_dpp v10, v10, v10 row_ror:{sh} row_mask:0xf bank_mask:0xf")
        a.e(f"v_max_f32_dpp v12, v12, v12 row_ror:{sh} row_mask:0xf bank_mask:0xf\ns_nop 0")
    a.e("""
    v_mov_b32 v11, v10
    v_mov_b32 v13, v12
    v_mov_b32 v7, v6
    s_nop 1
    v_permlane16_swap_b32 v10, v11
    v_permlane16_swap_b32 v12, v13
    v_permlane32_swap_b32 v6, v7
    s_nop 1
    v_max_f32 v10, v10, v11
    v_max_f32 v12, v12, v13
    v_add_f32 v6, v6, v7
    v_mov_b32 v11, v10
    v_mov_b32 v13, v12
    s_nop 1
    v_permlane32_swap_b32 v10, v11
    v_permlane32_swap_b32 v12, v13
    s_nop 1
    v_max_f32 v10, v10, v11
    v_max_f32 v12, v12, v13
    v_add_f32 v10, v10, v12
    v_mul_f32 v6, v6, v10
    v_sqrt_f32 v6, v6
    s_nop 0
    v_mul_f32 v6, 0xbf802000, v6
    """)
    for i in range(16):
        a.e(f"v_mov_b32 v{CM+i}, v6")
    a.e(f"""
    s_waitcnt vmcnt(30)
    v_cmp_gt_u32 vcc, 420, v0
    s_and_saveexec_b64 s[44:45], vcc
    s_cbranch_execz K2_NOKV2
    """)
    for st in (4, 2, 1):
        for i in range(st):
            for h in range(2):
                x = KVR + 4 * i + 2 * h; y = KVR + 4 * (i + st) + 2 * h
                a.e(f"v_pk_add_f32 {vr(x,2)}, {vr(x,2)}, {vr(y,2)}")
    a.e(f"""
    v_lshlrev_b32 v6, 4, v0
    v_add_u32 v6, {SCR}, v6
    ds_write_b128 v6, {vr(KVR,4)}
    """)
    a.label("K2_NOKV2")
    a.e("s_mov_b64 exec, s[44:45]")
    a.e(f"""
    s_lshr_b32 s24, s21, 1
    s_mul_i32 s24, s24, 5
    s_and_b32 s25, s21, 1
    s_lshl_b32 s46, s25, 1
    v_add_u32 v6, s46, v9
    v_mov_b32 v7, 4
    v_cmp_eq_u32 vcc, 2, v9
    s_lshr_b32 s46, s20, 2
    s_mul_i32 s46, s46, 20
    v_cndmask_b32 v6, v6, v7, vcc
    v_add_u32 v6, s24, v6
    v_lshrrev_b32 v7, 2, v6
    v_add_u32 v7, s46, v7
    v_and_b32 v6, 3, v6
    s_mul_i32 s46, s22, 40
    v_add_u32 v7, s46, v7
    v_mul_u32_u24 v7, 5, v7
    v_mul_u32_u24 v10, 3277, v8
    v_lshrrev_b32 v10, 16, v10
    v_mul_u32_u24 v11, 20, v10
    v_sub_u32 v11, v8, v11
    v_lshrrev_b32 v12, 2, v11
    v_add_u32 v7, v7, v12
    v_and_b32 v11, 3, v11
    v_lshl_add_u32 v11, v10, 2, v11
    v_lshl_add_u32 v11, v6, 4, v11
    v_lshlrev_b32 v7, 10, v7
    v_lshl_add_u32 v7, v11, 4, v7
    v_add_u32 v7, {WT}, v7
    s_lshl_b32 s25, s25, 3
    s_waitcnt vmcnt(22)
    """)
    for j in range(4):
        a.e(f"v_lshl_or_b32 v{WOR+j}, v{WOR+2*j+1}, 16, v{WOR+2*j}")
    a.e(f"""
    v_cmp_gt_u32 vcc, 2, v9
    s_and_saveexec_b64 s[44:45], vcc
    s_cbranch_execz K2_NOW1
    buffer_store_dwordx4 {vr(WOR,4)}, v7, s[28:31], 0 offen
    """)
    a.label("K2_NOW1")
    a.e(f"""
    s_mov_b64 exec, s[44:45]
    v_cmp_eq_u32 vcc, 2, v9
    s_and_saveexec_b64 s[44:45], vcc
    s_cbranch_execz K2_NOW2
    buffer_store_dwordx2 {vr(WOR,2)}, v7, s[28:31], s25 offen
    """)
    a.label("K2_NOW2")
    a.e("s_mov_b64 exec, s[44:45]")
    a.e("s_waitcnt vmcnt(18)\nv_mov_b32 v6, 0")
    for i in range(5):
        a.e(f"v_dot2_f32_bf16 v6, v{GX+i}, v{GX+6+i}, v6")
    a.e("s_nop 2")
    for sh in (8, 4, 2, 1):
        a.e(f"v_add_f32_dpp v6, v6, v6 row_ror:{sh} row_mask:0xf bank_mask:0xf\ns_nop 1")
    a.e(f"""
    v_mov_b32 v7, v6
    s_nop 1
    v_permlane16_swap_b32 v6, v7
    s_nop 1
    v_add_f32 v6, v6, v7
    v_mov_b32 v7, v6
    s_nop 1
    v_permlane32_swap_b32 v6, v7
    s_nop 1
    v_add_f32 v6, v6, v7
    v_mul_f32 v6, 0x{f32bits(-LOG2E):x}, v6
    v_exp_f32 v6, v6
    s_nop 0
    v_add_f32 v6, 1.0, v6
    v_rcp_f32 v6, v6
    s_lshl_b32 s26, s26, 2
    s_add_u32 s26, s26, {GATE}
    v_mov_b32 v7, s26
    v_cmp_eq_u32 vcc, 0, v1
    s_and_saveexec_b64 s[44:45], vcc
    buffer_store_dword v6, v7, s[28:31], 0 offen
    s_mov_b64 exec, s[44:45]
    """)
    a.e(f"""
    v_lshlrev_b32 v{AK1}, 4, v1
    v_lshlrev_b32 v{AK2}, 3, v2
    v_add_u32 v{AK2}, 1024, v{AK2}
    v_min_u32 v6, 20, v2
    v_mov_b32 v7, 4
    v_cmp_le_u32 vcc, 28, v2
    v_mul_u32_u24 v8, 21, v3
    v_mov_b32 v{IDX}, 0xdddddddd
    v_cndmask_b32 v6, v6, v7, vcc
    v_add_u32 v6, v6, v8
    v_lshlrev_b32 v{AV}, 4, v6
    v_add_u32 v{AV}, 1280, v{AV}
    v_add_u32 v{NK1}, {CHUNK}, v{AK1}
    v_add_u32 v{NK2}, {CHUNK}, v{AK2}
    v_add_u32 v{NV}, {CHUNK}, v{AV}
    """)
    for i in range(16):
        a.e(f"v_mov_b32 v{O+i}, 0")
    for i in range(8, 16):
        a.e(f"v_mov_b32 v{S[1]+i}, 0")
    for i in range(4):
        a.e(f"v_mov_b32 v{VHI+i}, 0")
    a.e(f"""
    s_waitcnt vmcnt(10) lgkmcnt(0)
    s_barrier
    ds_read_b128 {vr(KF1,4)}, v{AK1}
    ds_read_b64 {vr(KF2,2)}, v{AK2}
    s_waitcnt lgkmcnt(0)
    v_mfma_f32_32x32x16_bf16 {vr(S[0],16)}, {vr(KF1,4)}, {vr(Q1,4)}, {vr(CM,16)}
    v_mfma_f32_32x32x8_bf16 {vr(S[0],16)}, {vr(KF2,2)}, {vr(Q2,2)}, {vr(S[0],16)}
    s_nop 3
    ds_read_b128 {vr(KF1,4)}, v{AK1} offset:{TILE}
    ds_read_b64 {vr(KF2,2)}, v{AK2} offset:{TILE}
    ds_read_b128 {vr(VLO,4)}, v{AV}
    s_mov_b32 s47, 0
    s_mov_b32 s48, {2*CHUNK}
    s_nop 7
    """)
    a.raw(".p2align 6")
    a.label("K2_LOOP")
    for i in range(16):
        X = S[i & 1]; Y = S[(i + 1) & 1]
        def E(r): a.e(f"v_exp_f32 v{X+r}, v{X+r}")
        def rd(kind, tile):
            nxt = tile >= 16
            t = tile - 16 if nxt else tile
            if kind == "K1": a.e(f"ds_read_b128 {vr(KF1,4)}, v{NK1 if nxt else AK1} offset:{t*TILE}")
            if kind == "K2": a.e(f"ds_read_b64 {vr(KF2,2)}, v{NK2 if nxt else AK2} offset:{t*TILE}")
            if kind == "VLO": a.e(f"ds_read_b128 {vr(VLO,4)}, v{NV if nxt else AV} offset:{t*TILE}")
            if kind == "VHI": a.e(f"ds_read_b128 {vr(VHI,4)}, v{NV if nxt else AV} offset:{t*TILE+672}")
        if i == 13:
            a.e("s_waitcnt vmcnt(0)\ns_barrier\ns_cmp_lg_u32 s47, 1\ns_cbranch_scc1 K2_NODMA3")
            dma(KVIMG + 3 * CHUNK, 0, "L3")
            a.label("K2_NODMA3")
        E(0)
        a.e("s_waitcnt lgkmcnt(3)")
        a.e(f"v_smfmac_f32_32x32x32_bf16 {vr(O,16)}, {vr(VHI,4)}, {vr(Y+8,8)}, v{IDX}")
        rd("VHI", i)
        E(1); E(2); E(3)
        a.e("s_waitcnt lgkmcnt(3)")
        a.e(f"v_mfma_f32_32x32x16_bf16 {vr(Y,16)}, {vr(KF1,4)}, {vr(Q1,4)}, {vr(CM,16)}")
        rd("K1", i + 2)
        E(4); E(5); E(6); E(7)
        a.e("s_waitcnt lgkmcnt(3)")
        a.e(f"v_mfma_f32_32x32x8_bf16 {vr(Y,16)}, {vr(KF2,2)}, {vr(Q2,2)}, {vr(Y,16)}")
        rd("K2", i + 2)
        E(8); E(9); E(10); E(11)
        a.e("s_waitcnt lgkmcnt(3)")
        a.e(f"v_smfmac_f32_32x32x32_bf16 {vr(O,16)}, {vr(VLO,4)}, {vr(X,8)}, v{IDX}")
        rd("VLO", i + 1)
        E(12); E(13); E(14); E(15)
    a.e(f"""
    v_mov_b32 v{AK1}, v{NK1}
    v_mov_b32 v{AK2}, v{NK2}
    v_mov_b32 v{AV}, v{NV}
    s_cmp_eq_u32 s47, 1
    s_mov_b32 s48, {CHUNK}
    s_cselect_b32 s48, {(-2*CHUNK) & 0xffffffff}, s48
    v_add_u32 v{NK1}, s48, v{NK1}
    v_add_u32 v{NK2}, s48, v{NK2}
    v_add_u32 v{NV}, s48, v{NV}
    s_add_u32 s47, s47, 1
    s_cmp_lt_u32 s47, 4
    s_cbranch_scc1 K2_LOOP
    s_waitcnt lgkmcnt(0)
    v_smfmac_f32_32x32x32_bf16 {vr(O,16)}, {vr(VHI,4)}, {vr(S[1]+8,8)}, v{IDX}
    """)
    KVA = T
    TMP = T + 16
    NUM = S[0]
    a.e(f"""
    v_min_u32 v6, 20, v2
    v_mul_u32_u24 v6, 160, v6
    v_lshl_add_u32 v6, v3, 5, v6
    v_add_u32 v6, {SCR}, v6
    v_cmp_eq_u32 vcc, 0, v3
    """)
    for s in range(3):
        for p in range(2):
            a.e(f"ds_read_b128 {vr(TMP+s*16+p*8,4)}, v6 offset:{p*3360 + s*64}")
            a.e(f"ds_read_b128 {vr(TMP+s*16+p*8+4,4)}, v6 offset:{p*3360 + s*64 + 16}")
    a.e("s_waitcnt lgkmcnt(0)")
    for s in range(3):
        for j in range(4):
            x = TMP + s * 16 + 2 * j
            a.e(f"v_pk_add_f32 {vr(x,2)}, {vr(x,2)}, {vr(x+8,2)}")
        for j in range(4):
            x = TMP + s * 16 + 2 * j
            a.e(f"v_cvt_pk_bf16_f32 v{KVA+s*4+j}, v{x}, v{x+1}")
    a.e("v_mov_b32 v7, 0")
    for j in range(4):
        a.e(f"v_cndmask_b32 v{KVA+8+j}, v7, v{KVA+8+j}, vcc")
    a.e("s_nop 1")
    for s in range(3):
        cc = "0" if s == 0 else vr(NUM, 16)
        a.e(f"v_mfma_f32_32x32x16_bf16 {vr(NUM,16)}, {vr(KVA+4*s,4)}, {vr(PHQ+4*s,4)}, {cc}")
    a.label("K2_FIN")
    a.e(f"""
    v_mov_b32 v6, v{O+8}
    v_mov_b32 v7, v{O+8}
    s_nop 1
    v_permlane32_swap_b32 v6, v7
    s_nop 1
    v_cmp_le_f32 vcc, 0x{f32bits(THR):x}, v7
    s_nop 3
    s_cmp_eq_u64 vcc, -1
    s_cbranch_scc0 K2_FALLBACK
    """)
    a.label("K2_FIN2")
    a.e(f"""
    v_rcp_f32 v7, v7
    s_lshr_b32 s24, s21, 1
    s_mul_i32 s24, s24, 5
    s_and_b32 s25, s21, 1
    s_lshl_b32 s46, s25, 1
    s_add_u32 s46, s46, s24
    v_add_u32 v8, s46, v3
    v_lshrrev_b32 v9, 4, v4
    v_mul_u32_u24 v9, 40, v9
    v_and_b32 v10, 15, v4
    v_lshrrev_b32 v11, 2, v8
    v_add_u32 v11, v11, v9
    v_and_b32 v8, 3, v8
    v_lshl_add_u32 v8, v8, 4, v10
    v_lshl_add_u32 v8, v11, 6, v8
    v_lshlrev_b32 v8, 4, v8
    v_add_u32 v8, {OC}, v8
    s_add_u32 s24, s24, 4
    s_lshr_b32 s46, s24, 2
    s_and_b32 s24, s24, 3
    s_lshl_b32 s24, s24, 4
    v_add_u32 v11, s46, v9
    v_add_u32 v10, s24, v10
    v_lshl_add_u32 v10, v11, 6, v10
    v_lshlrev_b32 v10, 4, v10
    v_add_u32 v10, {OC}, v10
    s_lshl_b32 s25, s25, 3
    s_add_u32 s26, s25, {20*1024}
    s_mov_b32 s27, {20*1024}
    """)
    OUT = T + 64
    for j in range(6):
        a.e(f"v_pk_mul_f32 {vr(O+2*j,2)}, {vr(O+2*j,2)}, v[6:7] op_sel:[0,1] op_sel_hi:[1,1]")
    for j in range(6):
        a.e(f"v_cvt_pk_bf16_f32 v{OUT+j}, v{O+2*j}, v{O+2*j+1}")
    a.e(f"""
    buffer_store_dwordx4 {vr(OUT,4)}, v8, s[28:31], s27 offen
    v_mov_b32 v6, v{NUM+8}
    v_mov_b32 v7, v{NUM+8}
    s_nop 1
    v_permlane32_swap_b32 v6, v7
    s_nop 1
    v_add_f32 v7, 0x{f32bits(1e-6):x}, v7
    v_rcp_f32 v7, v7
    s_nop 0
    """)
    for j in range(6):
        a.e(f"v_pk_mul_f32 {vr(NUM+2*j,2)}, {vr(NUM+2*j,2)}, v[6:7] op_sel:[0,1] op_sel_hi:[1,1]")
    for j in range(6):
        a.e(f"v_cvt_pk_bf16_f32 v{OUT+8+j}, v{NUM+2*j}, v{NUM+2*j+1}")
    a.e(f"""
    buffer_store_dwordx4 {vr(OUT+8,4)}, v8, s[28:31], 0 offen
    s_mov_b32 exec_hi, 0
    buffer_store_dwordx2 {vr(OUT+4,2)}, v10, s[28:31], s26 offen
    buffer_store_dwordx2 {vr(OUT+12,2)}, v10, s[28:31], s25 offen
    s_endpgm
    """)
    a.label("K2_FALLBACK")
    FS = S[1]
    a.e(f"""
    v_lshlrev_b32 v8, 4, v1
    v_lshlrev_b32 v9, 3, v2
    v_add_u32 v9, 1024, v9
    v_min_u32 v10, 20, v2
    v_mul_u32_u24 v11, 21, v3
    v_add_u32 v10, v10, v11
    v_lshlrev_b32 v10, 4, v10
    v_add_u32 v10, 1280, v10
    v_mov_b32 v12, 0xff800000
    s_mov_b32 s24, {KVIMG}
    """)
    a.label("K2_FB1")
    a.e(f"""
    buffer_load_dwordx4 {vr(KF1,4)}, v8, s[28:31], s24 offen
    buffer_load_dwordx2 {vr(KF2,2)}, v9, s[28:31], s24 offen
    s_waitcnt vmcnt(0)
    v_mfma_f32_32x32x16_bf16 {vr(FS,16)}, {vr(KF1,4)}, {vr(Q1,4)}, 0
    v_mfma_f32_32x32x8_bf16 {vr(FS,16)}, {vr(KF2,2)}, {vr(Q2,2)}, {vr(FS,16)}
    s_nop 15
    """)
    for i in range(0, 16, 2):
        a.e(f"v_max3_f32 v12, v12, v{FS+i}, v{FS+i+1}")
    a.e(f"""
    s_add_u32 s24, s24, {TILE}
    s_cmp_lt_u32 s24, {KVIMG + 64*TILE}
    s_cbranch_scc1 K2_FB1
    v_mov_b32 v13, v12
    s_nop 1
    v_permlane32_swap_b32 v12, v13
    s_nop 1
    v_max_f32 v12, v12, v13
    v_sub_f32 v12, 0, v12
    """)
    for i in range(16):
        a.e(f"v_mov_b32 v{CM+i}, v12\nv_mov_b32 v{O+i}, 0")
    a.e(f"s_mov_b32 s24, {KVIMG}")
    a.label("K2_FB2")
    a.e(f"""
    buffer_load_dwordx4 {vr(KF1,4)}, v8, s[28:31], s24 offen
    buffer_load_dwordx2 {vr(KF2,2)}, v9, s[28:31], s24 offen
    buffer_load_dwordx4 {vr(VLO,4)}, v10, s[28:31], s24 offen
    buffer_load_dwordx4 {vr(VHI,4)}, v10, s[28:31], s24 offen offset:672
    s_waitcnt vmcnt(0)
    v_mfma_f32_32x32x16_bf16 {vr(FS,16)}, {vr(KF1,4)}, {vr(Q1,4)}, {vr(CM,16)}
    v_mfma_f32_32x32x8_bf16 {vr(FS,16)}, {vr(KF2,2)}, {vr(Q2,2)}, {vr(FS,16)}
    s_nop 15
    """)
    for i in range(16):
        a.e(f"v_exp_f32 v{FS+i}, v{FS+i}")
    a.e(f"""
    s_nop 3
    v_smfmac_f32_32x32x32_bf16 {vr(O,16)}, {vr(VLO,4)}, {vr(FS,8)}, v{IDX}
    v_smfmac_f32_32x32x32_bf16 {vr(O,16)}, {vr(VHI,4)}, {vr(FS+8,8)}, v{IDX}
    s_add_u32 s24, s24, {TILE}
    s_cmp_lt_u32 s24, {KVIMG + 64*TILE}
    s_nop 7
    s_cbranch_scc1 K2_FB2
    s_nop 15
    v_mov_b32 v6, v{O+8}
    v_mov_b32 v7, v{O+8}
    s_nop 1
    v_permlane32_swap_b32 v6, v7
    s_nop 1
    s_branch K2_FIN2
    """)
    a.label("K2_END")
    a.e("s_endpgm")
    return a
```

```python
from asmlib import *
from k1 import *

K3_LDS = 4 * 4 * 5 * 1024

def k3():
    a = Asm()
    a.e("""
    s_cmp_ge_u32 s2, 256
    s_cbranch_scc1 K3_END
    s_load_dwordx2 s[4:5], s[0:1], 80
    s_load_dwordx2 s[6:7], s[0:1], 96
    v_lshrrev_b32 v2, 6, v0
    v_and_b32 v1, 63, v0
    s_and_b32 s3, s2, 7
    v_readfirstlane_b32 s20, v2
    s_lshr_b32 s18, s2, 3
    s_lshr_b32 s21, s3, 1
    s_lshl_b32 s21, s21, 3
    s_and_b32 s19, s18, 7
    s_add_u32 s21, s21, s19
    s_and_b32 s22, s3, 1
    s_lshl_b32 s22, s22, 2
    s_lshr_b32 s19, s18, 3
    s_add_u32 s22, s22, s19
    v_lshlrev_b32 v2, 4, v1
    s_waitcnt lgkmcnt(0)
    """)
    srd(a, 28, 6, 7, WS_SIZE)
    srd(a, 32, 4, 5, 2621440)
    a.e(f"""
    s_mul_i32 s24, s21, 160
    s_mul_i32 s25, s20, 10
    s_add_u32 s24, s24, s25
    s_lshl_b32 s24, s24, 10
    s_add_u32 s24, s24, {OC}
    s_mul_i32 s26, s22, 40
    s_add_u32 s26, s26, s25
    s_mul_i32 s26, s26, 5120
    s_add_u32 s26, s26, {WT}
    v_add_u32 v3, {40*1024}, v2
    v_add_u32 v4, {80*1024}, v2
    v_add_u32 v5, {120*1024}, v2
    v_add_u32 v6, 4096, v2
    v_and_b32 v8, 15, v1
    v_lshrrev_b32 v9, 4, v1
    s_lshl_b32 s27, s21, 6
    s_lshl_b32 s36, s20, 4
    s_add_u32 s27, s27, s36
    v_add_u32 v10, s27, v8
    v_lshlrev_b32 v11, 2, v10
    v_add_u32 v11, {GATE}, v11
    buffer_load_dword v12, v11, s[28:31], 0 offen
    """)
    ACC = 16
    def frag(k, idx):
        if k < 4:
            return vr(96 + k * 36 + idx * 4, 4)
        return vr((k - 4) * 36 + idx * 4, 4, "a")
    for k in range(10):
        for tt in range(4):
            a.e(f"buffer_load_dwordx4 {frag(k,tt)}, v{2+tt}, s[28:31], s24 offen")
        for t in range(4):
            a.e(f"buffer_load_dwordx4 {frag(k,4+t)}, v2, s[28:31], s26 offen offset:{t*1024}")
        a.e(f"buffer_load_dwordx4 {frag(k,8)}, v6, s[28:31], s26 offen")
        if k < 9:
            a.e("s_add_u32 s24, s24, 1024\ns_add_u32 s26, s26, 5120")
    for k in range(10):
        n = min(63, 9 * (9 - k))
        if k == 0 or n < 63 or True:
            a.e(f"s_waitcnt vmcnt({n})")
        for t in range(5):
            for tt in range(4):
                d = ACC + (tt * 5 + t) * 4
                cc = "0" if k == 0 else vr(d, 4)
                a.e(f"v_mfma_f32_16x16x32_bf16 {vr(d,4)}, {frag(k,4+t)}, {frag(k,tt)}, {cc}")
    a.e(f"""
    s_mul_i32 s36, s20, {4*5*1024}
    v_add_u32 v3, s36, v2
    s_mul_i32 s36, s20, {5*1024}
    v_add_u32 v4, s36, v2
    v_add_u32 v5, {2*4*5*1024}, v4
    s_nop 3
    """)
    for tt in range(4):
        for t in range(5):
            d = ACC + (tt * 5 + t) * 4
            a.e(f"ds_write_b128 v3, {vr(d,4)} offset:{(tt*5+t)*1024}")
    a.e("s_waitcnt lgkmcnt(0)\ns_barrier")
    R = 96
    for src in range(4):
        for t in range(5):
            base = "v4" if src < 2 else "v5"
            a.e(f"ds_read_b128 {vr(R+(src*5+t)*4,4)}, {base} offset:{(src&1)*4*5*1024 + t*1024}")
    a.e(f"""
    v_sub_f32 v13, 1.0, v12
    v_mul_u32_u24 v10, 1280, v10
    s_mul_i32 s36, s22, 160
    v_mul_u32_u24 v11, 40, v9
    v_add3_u32 v10, v10, v11, s36
    s_waitcnt lgkmcnt(0)
    """)
    for j in range(10):
        x = R + 2 * j
        a.e(f"v_pk_add_f32 {vr(x,2)}, {vr(x,2)}, {vr(x+20,2)}")
        a.e(f"v_pk_add_f32 {vr(x+40,2)}, {vr(x+40,2)}, {vr(x+60,2)}")
    for j in range(10):
        x = R + 2 * j
        a.e(f"v_pk_mul_f32 {vr(x,2)}, {vr(x,2)}, v[12:13] op_sel_hi:[1,0]")
        a.e(f"v_pk_fma_f32 {vr(x,2)}, {vr(x+40,2)}, v[12:13], {vr(x,2)} op_sel:[0,1,0] op_sel_hi:[1,1,1]")
    for j in range(10):
        x = R + 2 * j
        a.e(f"v_cvt_pk_bf16_f32 v{16+j}, v{x}, v{x+1}")
    a.e("""
    buffer_store_dwordx4 v[16:19], v10, s[32:35], 0 offen
    buffer_store_dwordx4 v[20:23], v10, s[32:35], 0 offen offset:16
    buffer_store_dwordx2 v[24:25], v10, s[32:35], 0 offen offset:32
    """)
    a.label("K3_END")
    a.e("s_endpgm")
    return a
```

```python
import sys
from asmlib import *
import k1, k2, k3
NAME = "gated_mix__linear_kernel_hedgehog__grouped_kv_mqa__prompt"
HDR = open(f"cdna_kernels/{NAME}.s.ref").read().split("; Override launch geometry")[0]
def kd(name, vgpr, acc, sgpr):
    return f""".amdhsa_kernel {name}
  .amdhsa_next_free_vgpr {vgpr}
  .amdhsa_next_free_sgpr {sgpr}
  .amdhsa_accum_offset {acc}
  .amdhsa_group_segment_fixed_size 0
  .amdhsa_kernarg_size 104
  .amdhsa_user_sgpr_count 2
  .amdhsa_user_sgpr_kernarg_segment_ptr 1
  .amdhsa_system_sgpr_workgroup_id_x 1
.end_amdhsa_kernel
"""
def build(path):
    ks = [
        ("proj_kernel", k1.k1(), 256, 512, 163840, 232, 232, 72),
        ("attn_kernel", k2.k2(), 256, 512, k2.K2_LDS, 192, 192, 56),
        ("outp_kernel", k3.k3(), 256, 256, k3.K3_LDS, 240 + 216, 240, 48),
    ]
    s = HDR
    for name, a, g, b, lds, *_ in ks:
        s += f"; @launch kernel={name} grid=({g},1,1) block=({b},1,1) lds={lds}\n"
    s += '.amdgcn_target "amdgcn-amd-amdhsa--gfx950"\n.text\n'
    for name, a, *_ in ks:
        errs = check_hazards(a.lines, name)
        if errs:
            print("\n".join(errs)); sys.exit(1)
        s += f".globl {name}\n.p2align 8\n.type {name},@function\n{name}:\n" + a.text()
    s += '.section .rodata,"a"\n'
    for name, a, g, b, lds, vg, acc, sg in ks:
        s += ".p2align 6\n" + kd(name, vg, acc, 100 if PROFILE else sg)
    open(path, "w").write(s)
if __name__ == "__main__":
    build(sys.argv[1] if len(sys.argv) > 1 else f"cdna_kernels/{NAME}.s")
```

```python
import re

import os
PROFILE = bool(int(os.environ.get("PROFILE", "0")))
PROF_BASE = 0x1800000
class Asm:
    def __init__(self):
        self.lines = []
        self.nst = 0
    def stamp(self, idx, real=False):
        if not PROFILE: return
        op = "s_memrealtime" if real else "s_memtime"
        self.e(f"s_waitcnt lgkmcnt(0)\n{op} s[96:97]\ns_waitcnt lgkmcnt(0)\ns_mov_b32 s{72+idx}, s96")
    def dump_stamps(self, kidx, srd, wave_sgpr):
        if not PROFILE: return
        self.e(f"s_mov_b64 exec, -1\ns_lshl_b32 s96, s2, 4\ns_add_u32 s96, s96, s{wave_sgpr}\ns_lshl_b32 s96, s96, 6\ns_add_u32 s96, s96, {PROF_BASE + kidx*0x40000}")
        self.e("v_mov_b32 v0, 0")
        for i in range(16):
            self.e(f"v_mov_b32 v1, s{72+i}\nbuffer_store_dword v1, v0, s[{srd}:{srd+3}], s96 offen offset:{4*i}\ns_nop 1")
    def init_stamps(self):
        if not PROFILE: return
        for i in range(16):
            self.e(f"s_mov_b32 s{72+i}, 0")
    def e(self, s):
        for ln in s.strip("\n").split("\n"):
            ln = ln.strip()
            if ln:
                self.lines.append("    " + ln)
    def label(self, name):
        self.lines.append(name + ":")
    def raw(self, s):
        self.lines.append(s)
    def c(self, s):
        self.lines.append("    ; " + s)
    def text(self):
        return "\n".join(self.lines) + "\n"

def vr(b, n=1, p="v"):
    return f"{p}{b}" if n == 1 else f"{p}[{b}:{b+n-1}]"
def sr(b, n=1):
    return f"s{b}" if n == 1 else f"s[{b}:{b+n-1}]"

_REG = re.compile(r"\b([vas])(\d+)\b|\b([vas])\[(\d+):(\d+)\]")
def regs_of(op):
    out = set()
    for m in _REG.finditer(op):
        if m.group(1):
            out.add((m.group(1), int(m.group(2))))
        else:
            for i in range(int(m.group(4)), int(m.group(5)) + 1):
                out.add((m.group(3), i))
    if re.search(r"\bvcc\b", op): out.add(("vcc", 0))
    if re.search(r"\bexec\b", op): out.add(("exec", 0))
    if re.search(r"\bm0\b", op): out.add(("m0", 0))
    return out

TRANS = ("v_exp_f32", "v_log_f32", "v_rcp_f32", "v_rsq_f32", "v_sqrt_f32", "v_sin_f32", "v_cos_f32")
def passes(op):
    if "32x32x4_2b" in op: return 16
    if "32x32" in op: return 8
    if "16x16" in op: return 4
    return 4

def split_ops(rest):
    ops, depth, cur = [], 0, ""
    for ch in rest:
        if ch == "[": depth += 1
        if ch == "]": depth -= 1
        if ch == "," and depth == 0:
            ops.append(cur.strip()); cur = ""
        else:
            cur += ch
    if cur.strip(): ops.append(cur.strip())
    return ops

class Ins:
    pass

def parse(line):
    s = line.split(";")[0].strip()
    if not s or s.endswith(":") or s.startswith("."):
        return None
    parts = s.split(None, 1)
    op = parts[0]
    rest = parts[1] if len(parts) > 1 else ""
    ops = split_ops(rest)
    I = Ins(); I.op = op; I.text = s; I.ops = ops
    I.ws = 1
    I.kind = "other"; I.dst = set(); I.src = set()
    I.srcC = set(); I.srcAB = set()
    if op == "s_nop":
        I.ws = int(ops[0], 0) + 1
        return I
    if op.startswith("v_mfma") or op.startswith("v_smfmac"):
        I.kind = "mfma"; I.passes = passes(op)
        I.dst = regs_of(ops[0])
        I.srcAB = regs_of(ops[1]) | regs_of(ops[2])
        if op.startswith("v_smfmac"):
            I.srcC = set(I.dst); I.srcAB |= regs_of(ops[3].split()[0])
        else:
            I.srcC = regs_of(ops[3].split()[0])
        I.src = I.srcAB | I.srcC
        return I
    if op.startswith("v_"):
        I.kind = "valu"
        I.trans = any(op.startswith(t) for t in TRANS)
        I.dpp = "row_" in s or "quad_perm" in s or "_dpp" in op or "wave_" in s
        I.perm = op.startswith("v_permlane")
        if op.startswith("v_cmp"):
            I.dst = regs_of(ops[0]); I.src = set().union(*[regs_of(o) for o in ops[1:]])
            if op.startswith("v_cmpx"): I.dst.add(("exec", 0))
        elif op.startswith("v_permlane") or op.startswith("v_swap"):
            I.dst = regs_of(ops[0]) | regs_of(ops[1]); I.src = set(I.dst)
        elif op.startswith(("v_add_co", "v_sub_co", "v_addc_co", "v_subb_co", "v_subrev_co", "v_div_scale", "v_mad_u64")):
            I.dst = regs_of(ops[0]) | regs_of(ops[1]); I.src = set().union(*[regs_of(o) for o in ops[2:]])
        else:
            I.dst = regs_of(ops[0]); I.src = set().union(*[regs_of(o.split(" op_sel")[0]) for o in ops[1:]]) if len(ops) > 1 else set()
            if op.startswith(("v_fmac", "v_dot2c", "v_mac", "v_pk_fmac")): I.src |= I.dst
            if op.startswith("v_cndmask") and len(ops) == 3: I.src.add(("vcc", 0))
        I.rdlane = op.startswith(("v_readlane", "v_readfirstlane"))
        return I
    if op.startswith(("buffer_", "global_", "flat_", "ds_")):
        I.kind = "mem"
        isload = ("load" in op or op.startswith("ds_read") or "permute" in op or "swizzle" in op) and " lds" not in (" " + s + " ").replace("lds ", " lds ")
        if re.search(r"\blds\b", s) and op.startswith(("buffer_load", "global_load")): isload = False
        allr = [regs_of(o.split(" offset")[0]) for o in ops]
        if isload:
            I.dst = allr[0]; I.src = set().union(*allr[1:]) if len(allr) > 1 else set()
        else:
            I.src = set().union(*allr) if allr else set()
        I.lds_dma = bool(re.search(r"\blds\b", s)) and op.startswith(("buffer_load", "global_load"))
        I.widestore = ("store" in op and ("x3" in op or "x4" in op)) and op.startswith(("buffer_", "global_", "flat_"))
        if I.widestore:
            I.sdata = allr[0] if op.startswith("buffer_") else allr[1]
        return I
    if op.startswith("s_"):
        I.kind = "salu"
        if ops:
            if op.startswith(("s_cmp", "s_cbranch", "s_branch", "s_waitcnt", "s_barrier", "s_bitcmp", "s_setprio", "s_sleep", "s_endpgm")):
                I.src = set().union(*[regs_of(o) for o in ops])
            else:
                I.dst = regs_of(ops[0]); I.src = set().union(*[regs_of(o) for o in ops[1:]]) if len(ops) > 1 else set()
                if "saveexec" in op: I.dst.add(("exec", 0))
        return I
    return I

def check_hazards(lines, name=""):
    ins = [(i, parse(l)) for i, l in enumerate(lines)]
    ins = [(i, x) for i, x in ins if x is not None]
    errs = []
    n = len(ins)
    WIN = 24
    for a in range(n):
        ia, A = ins[a]
        dist = 0
        for b in range(a + 1, min(n, a + WIN + 1)):
            ib, B = ins[b]
            need = 0
            vdstA = {r for r in A.dst if r[0] in "va"}
            sdstA = {r for r in A.dst if r[0] in ("s", "vcc")}
            if A.kind == "valu":
                if B.kind == "mfma" and vdstA & B.src: need = max(need, 2)
                if B.kind == "valu":
                    if A.trans and not B.trans and vdstA & (B.src | B.dst): need = max(need, 1)
                    if B.perm and vdstA & B.src: need = max(need, 2)
                    if B.dpp and vdstA & B.src: need = max(need, 2)
                    if B.rdlane and vdstA & B.src: need = max(need, 1)
                    if sdstA & B.src: need = max(need, 4 if B.rdlane or B.op.startswith("v_writelane") else 2)
                    if ("exec", 0) in A.dst and (B.dpp): need = max(need, 5)
                    if ("exec", 0) in A.dst and (B.rdlane or B.perm): need = max(need, 4)
                if B.kind == "mfma" and ("exec", 0) in A.dst: need = max(need, 4)
                if B.kind == "mem" and sdstA & B.src: need = max(need, 5)
                if A.trans and B.kind in ("mem",) and vdstA & B.src: need = max(need, 1)
            if A.kind == "mfma":
                p = A.passes
                tbl_ab = {2: 5, 4: 8, 8: 12, 16: 20}[p]
                tbl_ov = {2: 4, 4: 6, 8: 10, 16: 18}[p]
                if B.kind == "mfma":
                    if A.dst & B.srcAB: need = max(need, tbl_ab)
                    if A.dst & B.srcC:
                        if B.srcC == A.dst and B.passes == p: need = max(need, 2 if p == 2 else 0)
                        else: need = max(need, tbl_ov)
                    elif A.dst & B.dst:
                        need = max(need, tbl_ov if not (A.dst == B.dst and B.passes == p) else 0)
                if B.kind == "valu" and A.dst & (B.src | B.dst): need = max(need, tbl_ab)
                if B.kind == "mem" and A.dst & (B.src | B.dst): need = max(need, tbl_ab)
                if B.kind == "valu" and A.srcC & B.dst: need = max(need, {2: 1, 4: 3, 8: 7, 16: 15}[p])
            if A.kind == "mem" and getattr(A, "widestore", False):
                if B.kind == "valu" and A.sdata & B.dst: need = max(need, 2)
                elif B.kind in ("mem", "mfma") and A.sdata & B.dst: need = max(need, 1)
            if A.kind == "salu" and ("m0", 0) in A.dst and B.kind == "mem" and getattr(B, "lds_dma", False):
                need = max(need, 1)
            if need > dist:
                errs.append(f"{name}: line {ia}: '{A.text}' -> line {ib}: '{B.text}' needs {need} has {dist}")
            dist += B.ws
            if dist >= 21: break
    return errs
```

```python
from asmlib import *
import struct
def f32bits(x): return struct.unpack("<I", struct.pack("<f", x))[0]

KVIMG = 0x0
KMAX = 0x2C000
GATE = 0x2D000
KVP  = 0x30000
QB   = 0x200000
PHIQ = 0x480000
OC   = 0x980000
WT   = 0xE80000
WS_SIZE = 0x2000000
VROWS = 22
VBLK = VROWS * 32
TILE = 1280 + 2 * VBLK
LOG2E = 1.4426950408889634
QSCALE = (20 ** -0.5) * LOG2E

STG = 39936
XOFF, WOFF, EOFF = 0, 16384, 36864
PHIB = 4 * STG
PKRS, VRS = 352, 224
VB = 128 * PKRS

def srd(a, d, lo, hi, size):
    a.e(f"s_mov_b32 s{d}, s{lo}\ns_mov_b32 s{d+1}, s{hi}\ns_mov_b32 s{d+2}, {size}\ns_mov_b32 s{d+3}, 0x20000")

def k1():
    a = Asm()
    a.e("""
    s_cmp_ge_u32 s2, 256
    s_cbranch_scc1 K1_END
    s_load_dwordx4 s[4:7], s[0:1], 0
    s_load_dwordx2 s[8:9], s[0:1], 16
    s_load_dwordx2 s[10:11], s[0:1], 40
    s_load_dwordx4 s[12:15], s[0:1], 48
    s_load_dwordx2 s[16:17], s[0:1], 96
    v_lshrrev_b32 v2, 6, v0
    v_and_b32 v1, 63, v0
    s_and_b32 s3, s2, 7
    v_readfirstlane_b32 s20, v2
    s_lshr_b32 s18, s2, 3
    s_and_b32 s21, s3, 1
    s_lshl_b32 s21, s21, 3
    s_and_b32 s19, s18, 7
    s_add_u32 s21, s21, s19
    s_lshr_b32 s22, s3, 1
    s_lshl_b32 s22, s22, 2
    s_lshr_b32 s19, s18, 3
    s_add_u32 s22, s22, s19
    s_and_b32 s23, s22, 7
    s_lshr_b32 s24, s22, 3
    s_and_b32 s25, s23, 3
    s_lshr_b32 s26, s23, 2
    s_mul_i32 s26, s26, s24
    """)
    a.init_stamps(); a.stamp(0, True); a.stamp(1)
    a.e("""
    s_cmp_lt_u32 s20, 4
    s_cbranch_scc1 K1_COMPUTE
    """)
    a.c("---- loader ----")
    a.e("""
    s_sub_u32 s27, s20, 4
    s_lshr_b32 s48, s27, 1
    s_and_b32 s49, s27, 1
    s_and_b32 s50, s24, s48
    s_mul_i32 s51, s23, 160
    s_mul_i32 s52, s48, 1280
    s_add_u32 s52, s52, 1280
    s_cmp_eq_u32 s24, 0
    s_cselect_b32 s52, s52, 0
    s_add_u32 s51, s51, s52
    v_lshrrev_b32 v2, 3, v1
    v_and_b32 v3, 7, v1
    v_lshrrev_b32 v4, 4, v1
    v_xor_b32 v5, v3, v4
    v_xor_b32 v6, 4, v5
    v_mul_u32_u24 v2, 1280, v2
    s_mul_i32 s53, s27, 40960
    v_add_u32 v2, s53, v2
    v_lshl_add_u32 v8, v5, 4, v2
    v_lshl_add_u32 v9, v6, 4, v2
    v_add_u32 v10, 18432, v8
    v_add_u32 v11, 27648, v9
    v_add_u32 v9, 9216, v9
    s_waitcnt lgkmcnt(0)
    """)
    a.e("""
    s_mul_i32 s53, s21, 163840
    s_add_u32 s28, s4, s53
    s_addc_u32 s29, s5, 0
    s_mov_b32 s30, 163840
    s_mov_b32 s31, 0x20000
    s_cmp_eq_u32 s50, 1
    s_cselect_b32 s32, s10, s6
    s_cselect_b32 s33, s11, s7
    s_movk_i32 s54, 3840
    s_cselect_b32 s54, 1280, s54
    s_mov_b32 s34, 2457600
    s_cselect_b32 s34, 819200, s34
    s_add_u32 s32, s32, s51
    s_addc_u32 s33, s33, 0
    s_sub_u32 s34, s34, s51
    s_mov_b32 s35, 0x20000
    s_cmp_lt_u32 s25, 2
    s_cselect_b32 s36, s12, s14
    s_cselect_b32 s37, s13, s15
    s_mov_b32 s38, 25600
    s_mov_b32 s39, 0x20000
    s_mul_i32 s53, s23, 3200
    s_add_u32 s40, s8, s53
    s_addc_u32 s41, s9, 0
    s_mov_b32 s42, 3200
    s_mov_b32 s43, 0x20000
    s_lshl_b32 s55, s54, 6
    """)
    a.e("s_mul_i32 s53, s49, 320\ns_movk_i32 s56, 6554")
    for q in range(5):
        a.e(f"""
        v_add_u32 v2, s53, v1
        v_add_u32 v2, {q*64}, v2
        v_mul_u32_u24 v3, s56, v2
        v_lshrrev_b32 v3, 16, v3
        v_mul_u32_u24 v4, 10, v3
        v_sub_u32 v4, v2, v4
        v_and_b32 v5, 0x33, v3
        v_and_b32 v6, 4, v3
        v_lshl_or_b32 v5, v6, 1, v5
        v_and_b32 v6, 8, v3
        v_lshrrev_b32 v6, 1, v6
        v_or_b32 v5, v5, v6
        v_mul_u32_u24 v5, s54, v5
        v_lshl_add_u32 v{12+q}, v4, 4, v5
        """)
        if 0 < q < 4:
            a.e(f"v_subrev_u32 v{12+q}, {q*1024}, v{12+q}")
    a.e("""
    s_lshl_b32 s53, s27, 10
    v_lshlrev_b32 v17, 4, v1
    v_add_u32 v17, s53, v17
    s_lshl_b32 s57, s27, 12
    s_mul_i32 s58, s48, 10240
    s_mul_i32 s59, s49, 5120
    s_add_u32 s58, s58, s59
    s_add_u32 s58, s58, 16384
    s_add_u32 s59, s53, 36864
    s_cmp_lt_u32 s27, 3
    s_cselect_b32 s60, s24, 0
    s_and_b32 s66, s18, 7
    s_lshr_b32 s67, s18, 3
    s_mul_i32 s67, s67, 3
    s_add_u32 s66, s66, s67
    s_cmp_ge_u32 s66, 10
    s_cselect_b32 s67, 10, 0
    s_sub_u32 s66, s66, s67
    s_lshl_b32 s61, s66, 7
    s_mul_i32 s62, s66, s55
    s_mul_i32 s63, s66, 2560
    s_mov_b32 s64, 0
    """)
    a.e(f"""
    s_add_u32 m0, s53, {PHIB}
    s_nop 0
    buffer_load_dwordx4 v17, s[40:43], 0 offen lds
    """)
    def issue(tag):
        a.e(f"""
        s_cmp_eq_u32 s60, 0
        s_cbranch_scc1 K1_NOE_{tag}
        s_add_u32 m0, s59, s64
        s_nop 0
        buffer_load_dwordx4 v17, s[36:39], s63 offen lds
        """)
        a.label(f"K1_NOE_{tag}")
        a.e("s_add_u32 m0, s57, s64\ns_nop 0")
        for q in range(4):
            a.e(f"buffer_load_dwordx4 v{8+q}, s[28:31], s61 offen offset:{q*1024} lds")
        a.e("s_add_u32 m0, s58, s64\ns_nop 0")
        for q in range(4):
            a.e(f"buffer_load_dwordx4 v{12+q}, s[32:35], s62 offen offset:{q*1024} lds")
        a.e("s_add_u32 m0, m0, 4096\ns_nop 0")
        a.e("buffer_load_dwordx4 v16, s[32:35], s62 offen lds")
        a.e(f"""
        s_add_u32 s61, s61, 128
        s_add_u32 s62, s62, s55
        s_add_u32 s63, s63, 2560
        s_cmp_eq_u32 s61, 1280
        s_cselect_b32 s61, 0, s61
        s_cselect_b32 s62, 0, s62
        s_cselect_b32 s63, 0, s63
        s_add_u32 s64, s64, {STG}
        s_cmp_eq_u32 s64, {4*STG}
        s_cselect_b32 s64, 0, s64
        """)
    a.e("s_mov_b32 s65, 0")
    a.label("K1_LD_A")
    issue("A")
    a.e("""
    s_add_u32 s65, s65, 1
    s_cmp_lt_u32 s65, 4
    s_cbranch_scc1 K1_LD_A
    """)
    a.stamp(2)
    a.e("s_waitcnt vmcnt(27)")
    a.stamp(3)
    a.e("""
    s_barrier
    s_mov_b32 s65, 0
    """)
    a.label("K1_LD_B")
    a.e("s_waitcnt vmcnt(18)\ns_barrier")
    issue("B")
    a.e("""
    s_add_u32 s65, s65, 1
    s_cmp_lt_u32 s65, 6
    s_cbranch_scc1 K1_LD_B
    s_waitcnt vmcnt(18)
    s_barrier
    s_waitcnt vmcnt(9)
    s_barrier
    s_waitcnt vmcnt(0)
    """)
    a.stamp(4)
    a.e("s_barrier")
    a.stamp(5); a.stamp(6, True)
    if PROFILE: srd(a, 44, 16, 17, WS_SIZE)
    a.dump_stamps(0, 44, 20)
    a.e("s_endpgm")
    ACC = 16
    def acc(tt, seg, t=0): return ACC + ((tt * 2 + seg) * 5 + t) * 4
    ACCE = 96
    WF = [100, 140]; XF = [180, 188]; EF = [196, 200]
    a.label("K1_COMPUTE")
    a.e("""
    v_and_b32 v14, 15, v1
    v_lshrrev_b32 v15, 4, v1
    s_lshl_b32 s48, s20, 5
    s_lshl_b32 s49, s26, 4
    s_add_u32 s50, s48, s49
    s_sub_u32 s51, s48, s49
    s_add_u32 s51, s51, 16
    v_lshrrev_b32 v8, 1, v14
    v_xor_b32 v8, v8, v15
    v_xor_b32 v9, 4, v8
    v_add_u32 v10, s50, v14
    v_add_u32 v11, s51, v14
    v_lshlrev_b32 v10, 7, v10
    v_lshlrev_b32 v11, 7, v11
    v_lshl_add_u32 v2, v8, 4, v10
    v_lshl_add_u32 v3, v9, 4, v10
    v_lshl_add_u32 v4, v8, 4, v11
    v_lshl_add_u32 v5, v9, 4, v11
    v_lshrrev_b32 v8, 2, v14
    v_and_b32 v9, 3, v1
    v_lshrrev_b32 v10, 1, v15
    v_and_b32 v11, 1, v15
    v_lshlrev_b32 v10, 4, v10
    v_lshl_add_u32 v10, v11, 2, v10
    v_add_u32 v10, v10, v8
    v_mul_u32_u24 v10, 160, v10
    v_mul_u32_u24 v11, 40, v9
    v_add_u32 v6, v10, v11
    v_lshl_add_u32 v10, v15, 3, v8
    v_mul_u32_u24 v10, 40, v10
    v_lshlrev_b32 v11, 3, v9
    s_and_b32 s52, s25, 1
    s_cmp_eq_u32 s52, 1
    s_cselect_b64 vcc, -1, 0
    v_mov_b32 v12, 32
    s_nop 1
    v_cndmask_b32 v11, v11, v12, vcc
    v_add_u32 v7, v10, v11
    """)
    for i in range(ACC, ACCE + 4):
        a.e(f"v_mov_b32 v{i}, 0")
    a.e("s_waitcnt lgkmcnt(0)")
    srd(a, 44, 16, 17, WS_SIZE)
    a.e("""
    s_mov_b32 s53, 0
    s_mov_b32 s54, 0
    """)
    def setaddr():
        for i in range(6):
            a.e(f"v_add_u32 v{8+i}, s53, v{2+i}")
    def reads(ks, buf, extra):
        r = []
        for tt in range(2):
            r.append(f"ds_read_b128 {vr(XF[buf]+tt*4,4)}, v{8+tt*2+ks}")
        if extra:
            for b in range(2):
                r.append(f"ds_read_b64_tr_b16 {vr(EF[buf]+2*b,2)}, v13 offset:{EOFF + (32*ks+4*b)*40}")
        for seg in range(2):
            for t in range(5):
                for b in range(2):
                    off = WOFF + seg * 10240 + (32 * ks + 8 * b) * 160 + t * 8
                    r.append(f"ds_read_b64_tr_b16 {vr(WF[buf]+(seg*5+t)*4+2*b,2)}, v12 offset:{off}")
        return r
    def mfmas(buf, extra):
        m = []
        for seg in range(2):
            for t in range(5):
                for tt in range(2):
                    d = acc(tt, seg, t)
                    m.append(f"v_mfma_f32_16x16x32_bf16 {vr(d,4)}, {vr(WF[buf]+(seg*5+t)*4,4)}, {vr(XF[buf]+tt*4,4)}, {vr(d,4)}")
        if extra:
            m.append(f"v_mfma_f32_16x16x32_bf16 {vr(ACCE,4)}, {vr(EF[buf],4)}, {vr(XF[buf],4)}, {vr(ACCE,4)}")
        return m
    def interleave(m, r):
        ri = 0
        for x in m:
            a.e(x)
            for _ in range(2):
                if ri < len(r):
                    a.e(r[ri]); ri += 1
        while ri < len(r):
            a.e(r[ri]); ri += 1
    def mainloop(extra, tag):
        a.e("s_barrier")
        a.stamp(2)
        setaddr()
        for x in reads(0, 0, extra): a.e(x)
        a.label(f"K1_LOOP_{tag}")
        a.e("s_waitcnt lgkmcnt(0)")
        interleave(mfmas(0, extra), reads(1, 1, extra))
        a.e(f"""
        s_add_u32 s53, s53, {STG}
        s_cmp_eq_u32 s53, {4*STG}
        s_cselect_b32 s53, 0, s53
        s_waitcnt lgkmcnt(0)
        s_barrier
        """)
        setaddr()
        interleave(mfmas(1, extra), reads(0, 0, extra))
        a.e(f"""
        s_add_u32 s54, s54, 1
        s_cmp_lt_u32 s54, 10
        s_cbranch_scc1 K1_LOOP_{tag}
        s_waitcnt lgkmcnt(0)
        """)
    a.e("s_cmp_eq_u32 s24, 0\ns_cbranch_scc1 K1_KVMAIN")
    mainloop(True, "Q")
    a.e("s_branch K1_EPI")
    a.label("K1_KVMAIN")
    mainloop(False, "KV")
    a.label("K1_EPI")
    a.stamp(3)
    BOP = [100, 112]; AF = [124, 136]
    EP, EN, PK = 148, 168, 188
    a.e(f"""
    v_lshrrev_b32 v8, 2, v14
    v_and_b32 v9, 3, v1
    v_mul_u32_u24 v10, 800, v15
    v_mul_u32_u24 v11, 40, v8
    v_add_u32 v10, v10, v11
    v_add_u32 v10, {PHIB}, v10
    v_mov_b32 v11, {PHIB + 3200}
    v_cmp_eq_u32 vcc, v9, v15
    s_nop 1
    v_cndmask_b32 v2, v11, v10, vcc
    v_mov_b32 v{AF[0]+10}, 0
    v_mov_b32 v{AF[0]+11}, 0
    v_mov_b32 v{AF[1]+10}, 0
    v_mov_b32 v{AF[1]+11}, 0
    """)
    def aread(tp, buf):
        for u in range(3):
            for b in range(2 if u < 2 else 1):
                a.e(f"ds_read_b64_tr_b16 {vr(AF[buf]+u*4+2*b,2)}, v2 offset:{(8*u+4*b)*40 + tp*8}")
    aread(0, 0)
    aread(1, 1)
    for tt in range(2):
        for j in range(10):
            a.e(f"v_cvt_pk_bf16_f32 v{BOP[tt]+j}, v{acc(tt,0)+2*j}, v{acc(tt,0)+2*j+1}")
        a.e(f"v_mov_b32 v{BOP[tt]+10}, 0\nv_mov_b32 v{BOP[tt]+11}, 0")
    for tp in range(5):
        buf = tp & 1
        a.e(f"s_waitcnt lgkmcnt({5 if tp < 4 else 0})")
        for u in range(3):
            for tt in range(2):
                d = acc(tt, 0, tp)
                cc = "0" if u == 0 else vr(d, 4)
                a.e(f"v_mfma_f32_16x16x32_bf16 {vr(d,4)}, {vr(AF[buf]+u*4,4)}, {vr(BOP[tt]+u*4,4)}, {cc}")
        if tp + 2 < 5:
            aread(tp + 2, buf)
    a.e(f"""
    s_lshl_b32 s52, s21, 7
    s_add_u32 s55, s52, s50
    s_add_u32 s56, s52, s51
    v_add_u32 v3, s55, v14
    v_add_u32 v4, s56, v14
    s_lshl_b32 s57, s23, 2
    v_add_u32 v5, s57, v15
    v_lshlrev_b32 v5, 11, v5
    s_mov_b32 s60, {f32bits(LOG2E)}
    s_mov_b32 s61, {f32bits(LOG2E)}
    s_mov_b32 s62, {f32bits(QSCALE)}
    s_mov_b32 s63, {f32bits(QSCALE)}
    s_cmp_eq_u32 s24, 0
    s_cbranch_scc1 K1_EPI_KV1
    """)
    for tt in range(2):
        P = EP + tt * 10 + (tt * 0)
        P = [EP, EN][tt]
        for j in range(10):
            s = acc(tt, 1) + 2 * j
            a.e(f"v_pk_mul_f32 {vr(s,2)}, {vr(s,2)}, s[62:63]")
        for j in range(10):
            s = acc(tt, 1) + 2 * j
            a.e(f"v_cvt_pk_bf16_f32 v{P+j}, v{s}, v{s+1}")
        a.e(f"""
        v_add_u32 v6, v5, v{3+tt}
        v_mul_u32_u24 v6, 40, v6
        v_add_u32 v{6+tt}, {QB}, v6
        buffer_store_dwordx4 {vr(P,4)}, v{6+tt}, s[44:47], 0 offen
        buffer_store_dwordx4 {vr(P+4,4)}, v{6+tt}, s[44:47], 0 offen offset:16
        buffer_store_dwordx2 {vr(P+8,2)}, v{6+tt}, s[44:47], 0 offen offset:32
        """)
    a.e(f"""
    v_cvt_pk_bf16_f32 v8, v{ACCE}, v{ACCE+1}
    v_cvt_pk_bf16_f32 v9, v{ACCE+2}, v{ACCE+3}
    s_lshl_b32 s52, s21, 2
    s_add_u32 s52, s52, s20
    s_mul_i32 s57, s52, {TILE}
    s_cmp_ge_u32 s25, 2
    s_cbranch_scc1 K1_EX_V
    v_mov_b32 v10, 0
    v_dot2_f32_bf16 v10, v8, v8, v10
    v_dot2_f32_bf16 v10, v9, v9, v10
    v_add_u32 v11, s49, v14
    s_cmp_eq_u32 s25, 1
    s_cbranch_scc1 K1_EX_K1
    v_lshrrev_b32 v12, 1, v15
    v_lshlrev_b32 v12, 9, v12
    v_lshl_add_u32 v12, v11, 4, v12
    v_and_b32 v13, 1, v15
    v_lshl_add_u32 v12, v13, 3, v12
    buffer_store_dwordx2 v[8:9], v12, s[44:47], s57 offen
    v_mov_b32 v11, v10
    s_nop 1
    v_permlane32_swap_b32 v10, v11
    s_nop 1
    v_add_f32 v10, v10, v11
    v_mov_b32 v11, v10
    s_nop 1
    v_permlane16_swap_b32 v10, v11
    s_nop 1
    v_add_f32 v10, v10, v11
    s_branch K1_EX_KN
    """)
    a.label("K1_EX_K1")
    a.e(f"""
    v_lshlrev_b32 v12, 3, v11
    v_cmp_gt_u32 vcc, 16, v1
    s_and_saveexec_b64 s[58:59], vcc
    buffer_store_dwordx2 v[8:9], v12, s[44:47], s57 offen offset:1024
    s_mov_b64 exec, s[58:59]
    """)
    a.label("K1_EX_KN")
    a.e("s_nop 1")
    for sh in (8, 4, 2, 1):
        a.e(f"v_max_f32_dpp v10, v10, v10 row_ror:{sh} row_mask:0xf bank_mask:0xf\ns_nop 1")
    a.e(f"""
    s_lshl_b32 s52, s52, 1
    s_add_u32 s52, s52, s26
    s_lshl_b32 s57, s25, 7
    s_add_u32 s52, s52, s57
    s_lshl_b32 s52, s52, 2
    s_add_u32 s52, s52, {KMAX}
    v_mov_b32 v12, s52
    v_cmp_eq_u32 vcc, 0, v1
    s_and_saveexec_b64 s[58:59], vcc
    buffer_store_dword v10, v12, s[44:47], 0 offen
    s_mov_b64 exec, s[58:59]
    s_branch K1_EPI_PHI
    """)
    a.label("K1_EX_V")
    a.e(f"""
    s_mul_i32 s52, s26, {VBLK}
    s_add_u32 s57, s57, s52
    s_add_u32 s57, s57, 1280
    v_lshrrev_b32 v10, 3, v14
    v_mul_u32_u24 v10, {VROWS}, v10
    v_lshl_add_u32 v10, v15, 2, v10
    v_and_b32 v11, 7, v14
    v_lshlrev_b32 v11, 1, v11
    v_lshl_add_u32 v12, v10, 4, v11
    s_cmp_eq_u32 s25, 3
    s_cbranch_scc1 K1_EX_V1
    buffer_store_short v8, v12, s[44:47], s57 offen
    buffer_store_short_d16_hi v8, v12, s[44:47], s57 offen offset:16
    buffer_store_short v9, v12, s[44:47], s57 offen offset:32
    buffer_store_short_d16_hi v9, v12, s[44:47], s57 offen offset:48
    s_branch K1_EPI_PHI
    """)
    a.label("K1_EX_V1")
    a.e(f"""
    v_mov_b32 v13, 0x3f80
    v_cmp_eq_u32 vcc, 1, v15
    s_nop 1
    v_cndmask_b32 v13, v8, v13, vcc
    v_cmp_gt_u32 vcc, 32, v1
    s_and_saveexec_b64 s[58:59], vcc
    buffer_store_short v13, v12, s[44:47], s57 offen offset:256
    buffer_store_short_d16_hi v13, v12, s[44:47], s57 offen offset:272
    s_mov_b64 exec, s[58:59]
    v_cmp_gt_u32 vcc, 16, v1
    s_and_saveexec_b64 s[58:59], vcc
    buffer_store_short v9, v12, s[44:47], s57 offen offset:288
    buffer_store_short_d16_hi v9, v12, s[44:47], s57 offen offset:304
    s_mov_b64 exec, s[58:59]
    s_branch K1_EPI_PHI
    """)
    a.label("K1_EPI_KV1")
    for tt in range(2):
        P = [EP, EN][tt]
        for j in range(10):
            s = acc(tt, 1) + 2 * j
            a.e(f"v_cvt_pk_bf16_f32 v{P+j}, v{s}, v{s+1}")
        a.e(f"""
        v_mov_b32 v{P+10}, 0x3f80
        v_mov_b32 v{P+11}, 0
        v_add_u32 v6, s{50+tt}, v14
        v_mul_u32_u24 v6, {VRS}, v6
        v_mul_u32_u24 v7, 48, v15
        v_add_u32 v6, v6, v7
        ds_write_b128 v6, {vr(P,4)} offset:{VB}
        ds_write_b128 v6, {vr(P+4,4)} offset:{VB+16}
        ds_write_b128 v6, {vr(P+8,4)} offset:{VB+32}
        """)
    a.label("K1_EPI_PHI")
    a.stamp(4)
    a.e("s_nop 7")
    for tt in range(2):
        p = acc(tt, 0)
        a.e(f"v_max3_f32 v8, v{p}, v{p+1}, v{p+2}\nv_min3_f32 v10, v{p}, v{p+1}, v{p+2}")
        for i in range(3, 19, 2):
            a.e(f"v_max3_f32 v8, v8, v{p+i}, v{p+i+1}\nv_min3_f32 v10, v10, v{p+i}, v{p+i+1}")
        a.e(f"v_max_f32 v8, v8, v{p+19}\nv_min_f32 v10, v10, v{p+19}")
        a.e(f"v_mul_f32 v8, 0x{f32bits(-LOG2E):x}, v8\nv_mul_f32 v10, s60, v10")
        for j in range(10):
            a.e(f"v_pk_fma_f32 {vr(EP+2*j,2)}, {vr(p+2*j,2)}, s[60:61], v[8:9] op_sel_hi:[1,1,0]")
            a.e(f"v_pk_fma_f32 {vr(EN+2*j,2)}, {vr(p+2*j,2)}, s[60:61], v[10:11] op_sel_hi:[1,1,0] neg_lo:[1,0,0] neg_hi:[1,0,0]")
        for i in range(20):
            a.e(f"v_exp_f32 v{EP+i}, v{EP+i}")
        for i in range(20):
            a.e(f"v_exp_f32 v{EN+i}, v{EN+i}")
        a.e(f"v_pk_add_f32 v[8:9], {vr(EP,2)}, {vr(EP+2,2)}\nv_pk_add_f32 v[10:11], {vr(EN,2)}, {vr(EN+2,2)}")
        for j in range(2, 10):
            a.e(f"v_pk_add_f32 v[8:9], v[8:9], {vr(EP+2*j,2)}\nv_pk_add_f32 v[10:11], v[10:11], {vr(EN+2*j,2)}")
        a.e("v_add_f32 v8, v8, v9\nv_add_f32 v10, v10, v11\nv_rcp_f32 v8, v8\nv_rcp_f32 v10, v10\ns_nop 0")
        for j in range(10):
            a.e(f"v_pk_mul_f32 {vr(EP+2*j,2)}, {vr(EP+2*j,2)}, v[8:9] op_sel_hi:[1,0]")
            a.e(f"v_pk_mul_f32 {vr(EN+2*j,2)}, {vr(EN+2*j,2)}, v[10:11] op_sel_hi:[1,0]")
        PKt = PK + tt * 20
        for j in range(10):
            a.e(f"v_cvt_pk_bf16_f32 v{PKt+j}, v{EP+2*j}, v{EP+2*j+1}")
        for j in range(10):
            a.e(f"v_cvt_pk_bf16_f32 v{PKt+10+j}, v{EN+2*j}, v{EN+2*j+1}")
        a.e(f"s_cmp_eq_u32 s24, 0\ns_cbranch_scc1 K1_PHI_KV{tt}")
        a.e(f"""
        v_add_u32 v6, v5, v{3+tt}
        v_mul_u32_u24 v6, 80, v6
        v_add_u32 v{6+tt}, {PHIQ}, v6
        """)
        for i in range(5):
            a.e(f"buffer_store_dwordx4 {vr(PKt+4*i,4)}, v{6+tt}, s[44:47], 0 offen offset:{16*i}")
        if tt == 0:
            a.e(f"s_branch K1_PHI_NEXT{tt}")
        else:
            a.stamp(7); a.e("s_waitcnt vmcnt(0)" if PROFILE else ""); a.stamp(5); a.stamp(6, True); a.dump_stamps(0, 44, 20)
            a.e("s_endpgm")
        a.label(f"K1_PHI_KV{tt}")
        a.e(f"""
        v_add_u32 v6, s{50+tt}, v14
        v_mul_u32_u24 v6, {PKRS}, v6
        v_mul_u32_u24 v7, 80, v15
        v_add_u32 v{6+tt}, v6, v7
        """)
        for i in range(5):
            a.e(f"ds_write_b128 v{6+tt}, {vr(PKt+4*i,4)} offset:{16*i}")
        if tt == 0:
            a.label(f"K1_PHI_NEXT{tt}")
    a.e(f"""
    v_lshrrev_b32 v8, 2, v14
    v_and_b32 v9, 3, v1
    v_lshl_add_u32 v8, v15, 2, v8
    v_lshlrev_b32 v9, 3, v9
    s_mul_i32 s52, s20, 80
    s_mul_i32 s53, s20, 48
    s_add_u32 s53, s53, {VB}
    v_mul_u32_u24 v10, {PKRS}, v8
    v_add3_u32 v10, v10, v9, s52
    v_mul_u32_u24 v11, {VRS}, v8
    v_add3_u32 v11, v11, v9, s53
    s_waitcnt lgkmcnt(0)
    s_barrier
    """)
    KA = 100
    KB = 148
    KD = 16
    for ks in range(4):
        for T in range(3):
            for b in range(2):
                a.e(f"ds_read_b64_tr_b16 {vr(KA+(ks*3+T)*4+2*b,2)}, v10 offset:{(32*ks+16*b)*PKRS + T*32}")
        for ct in range(2):
            for b in range(2):
                a.e(f"ds_read_b64_tr_b16 {vr(KB+(ks*2+ct)*4+2*b,2)}, v11 offset:{(32*ks+16*b)*VRS + ct*32}")
        if ks >= 1:
            a.e("s_waitcnt lgkmcnt(10)")
            k = ks - 1
            for T in range(3):
                for ct in range(2):
                    d = KD + (T * 2 + ct) * 4
                    cc = "0" if k == 0 else vr(d, 4)
                    a.e(f"v_mfma_f32_16x16x32_bf16 {vr(d,4)}, {vr(KA+(k*3+T)*4,4)}, {vr(KB+(k*2+ct)*4,4)}, {cc}")
    a.e("s_waitcnt lgkmcnt(0)")
    k = 3
    for T in range(3):
        for ct in range(2):
            d = KD + (T * 2 + ct) * 4
            a.e(f"v_mfma_f32_16x16x32_bf16 {vr(d,4)}, {vr(KA+(k*3+T)*4,4)}, {vr(KB+(k*2+ct)*4,4)}, {vr(d,4)}")
    a.e(f"""
    s_lshl_b32 s52, s21, 5
    s_lshl_b32 s53, s23, 2
    s_add_u32 s52, s52, s53
    s_add_u32 s52, s52, s20
    s_mul_i32 s52, s52, 3360
    s_add_u32 s52, s52, {KVP}
    v_mul_u32_u24 v8, 160, v14
    v_lshl_add_u32 v8, v15, 4, v8
    v_cmp_gt_u32 s[56:57], 5, v14
    v_cmp_gt_u32 s[58:59], 32, v1
    s_nop 3
    s_and_b64 s[60:61], s[56:57], s[58:59]
    """)
    def st(T, ct):
        d = KD + (T * 2 + ct) * 4
        a.e(f"buffer_store_dwordx4 {vr(d,4)}, v8, s[44:47], s52 offen offset:{ct*16*160 + T*64}")
    st(0, 0); st(1, 0)
    a.e("s_mov_b64 exec, s[58:59]"); st(2, 0)
    a.e("s_mov_b64 exec, s[56:57]"); st(0, 1); st(1, 1)
    a.e("s_mov_b64 exec, s[60:61]"); st(2, 1)
    a.stamp(7); a.e("s_waitcnt vmcnt(0)" if PROFILE else ""); a.stamp(5); a.stamp(6, True); a.dump_stamps(0, 44, 20)
    a.label("K1_END")
    a.e("s_endpgm")
    return a
```

```python
from asmlib import *
from k1 import *
import os

CHUNK = 16 * TILE
NDMA = CHUNK // 1024
SCR = 3 * CHUNK
XCH = SCR + 6784
K2_LDS = SCR + 6784
THR = 2.0 ** -60
ZPAD = int(os.environ.get("ZPAD", "1"))

def k2():
    a = Asm()
    a.e("""
    s_cmp_ge_u32 s2, 256
    s_cbranch_scc1 K2_END
    s_load_dwordx2 s[4:5], s[0:1], 0
    s_load_dwordx2 s[6:7], s[0:1], 24
    s_load_dwordx4 s[8:11], s[0:1], 64
    s_load_dwordx2 s[12:13], s[0:1], 96
    v_lshrrev_b32 v2, 6, v0
    v_and_b32 v1, 63, v0
    s_and_b32 s3, s2, 7
    v_readfirstlane_b32 s20, v2
    s_lshr_b32 s18, s2, 3
    s_and_b32 s19, s18, 3
    s_lshl_b32 s21, s3, 2
    s_add_u32 s21, s21, s19
    s_lshr_b32 s22, s18, 2
    v_and_b32 v2, 31, v1
    v_lshrrev_b32 v3, 5, v1
    s_and_b32 s49, s20, 3
    s_lshr_b32 s50, s20, 2
    s_lshl_b32 s23, s22, 8
    s_lshl_b32 s24, s49, 6
    s_add_u32 s23, s23, s24
    s_lshl_b32 s24, s50, 5
    s_add_u32 s24, s24, s23
    v_add_u32 v4, s24, v2
    s_lshl_b32 s24, s21, 11
    v_add_u32 v5, s24, v4
    s_add_u32 s24, s24, s23
    v_add_u32 v14, s24, v2
    s_waitcnt lgkmcnt(0)
    """)
    a.init_stamps(); a.stamp(0, True); a.stamp(1)
    srd(a, 28, 12, 13, WS_SIZE)
    srd(a, 32, 4, 5, 2621440)
    srd(a, 36, 10, 11, 1280)
    a.e("""
    s_cmp_lt_u32 s20, 4
    s_cselect_b32 s40, s6, s8
    s_cselect_b32 s41, s7, s9
    s_mov_b32 s42, 819200
    s_mov_b32 s43, 0x20000
    """)
    Q1 = [16, 20]; Q2 = 24
    IDX = 26
    AK1, AK2, AV = 27, 28, 29
    NK1, NK2, NV = 30, 31, 32
    VDMA = 33
    KF1, KF2 = 36, 40
    VLO, VHI = 44, 48
    PHQ = 52
    CM = 64
    S = [96, 128]
    O = 160
    T = 128
    a.e(f"""
    v_mul_u32_u24 v6, 40, v14
    v_add_u32 v6, {QB}, v6
    v_lshl_add_u32 v7, v3, 4, v6
    v_mul_u32_u24 v8, 1280, v3
    v_add_u32 v6, v6, v8
    buffer_load_dwordx4 {vr(Q1[0],4)}, v7, s[28:31], 0 offen
    buffer_load_dwordx4 {vr(Q1[1],4)}, v7, s[28:31], 0 offen offset:1280
    buffer_load_dwordx2 {vr(Q2,2)}, v6, s[28:31], 0 offen offset:32
    v_lshlrev_b32 v8, 3, v1
    v_add_u32 v8, {KMAX}, v8
    buffer_load_dwordx2 v[10:11], v8, s[28:31], 0 offen
    buffer_load_dwordx2 v[12:13], v8, s[28:31], 0 offen offset:512
    s_lshl_b32 s27, s20, 10
    v_lshlrev_b32 v{VDMA}, 4, v1
    v_add_u32 v{VDMA}, s27, v{VDMA}
    """)
    def dma(mem, slot_base, tag):
        a.e(f"s_cmp_ge_u32 s20, {NDMA-40}\ns_cbranch_scc1 K2_DMA_{tag}")
        a.e(f"s_add_u32 m0, s27, {slot_base + 40*1024}\ns_mov_b32 s24, {mem + 40*1024}")
        a.e(f"buffer_load_dwordx4 v{VDMA}, s[28:31], s24 offen lds")
        a.label(f"K2_DMA_{tag}")
        for q in range(5):
            a.e(f"s_add_u32 m0, s27, {slot_base + q*8192}\ns_mov_b32 s24, {mem + q*8192}")
            a.e(f"buffer_load_dwordx4 v{VDMA}, s[28:31], s24 offen lds")
    dma(KVIMG, 0, "P0")
    KVR = T
    a.e(f"""
    v_cmp_le_u32 vcc, 210, v0
    v_mov_b32 v14, 0
    v_mov_b32 v15, 210
    v_cndmask_b32 v14, v14, v15, vcc
    v_sub_u32 v14, v0, v14
    v_mov_b32 v15, 0
    v_mov_b32 v9, {8*32*3360}
    v_cndmask_b32 v15, v15, v9, vcc
    v_lshl_add_u32 v9, v14, 4, v15
    s_mul_i32 s24, s21, 3360
    s_add_u32 s24, s24, {KVP}
    v_cmp_gt_u32 vcc, 420, v0
    s_and_saveexec_b64 s[44:45], vcc
    s_cbranch_execz K2_NOKV
    """)
    for i in range(8):
        a.e(f"buffer_load_dwordx4 {vr(KVR+4*i,4)}, v9, s[28:31], s24 offen")
        if i < 7: a.e(f"s_add_u32 s24, s24, {32*3360}")
    a.label("K2_NOKV")
    a.e("s_mov_b64 exec, s[44:45]")
    WOR = T + 32
    a.e(f"""
    v_and_b32 v8, 255, v0
    v_mul_u32_u24 v9, 820, v8
    v_lshrrev_b32 v9, 16, v9
    v_mul_u32_u24 v15, 80, v9
    v_sub_u32 v8, v8, v15
    v_lshlrev_b32 v15, 2, v9
    v_cmp_eq_u32 vcc, 2, v9
    v_mov_b32 v34, 16
    s_mul_i32 s24, s21, 20
    v_cndmask_b32 v15, v15, v34, vcc
    v_add_u32 v15, s24, v15
    v_mul_u32_u24 v15, 1280, v15
    s_mul_i32 s25, s22, 160
    v_lshl_add_u32 v15, v8, 1, v15
    v_add_u32 v34, 10240, v15
    """)
    for j in range(4):
        a.e(f"buffer_load_ushort v{WOR+j}, v15, s[40:43], s25 offen offset:{j*1280}")
    for j in range(4):
        a.e(f"buffer_load_ushort v{WOR+4+j}, v34, s[40:43], s25 offen offset:{j*1280}")
    GX = T + 40
    a.e(f"""
    s_lshl_b32 s24, s22, 8
    s_lshl_b32 s25, s21, 3
    s_add_u32 s24, s24, s25
    s_add_u32 s26, s24, s20
    s_mul_i32 s24, s26, 1280
    v_mul_u32_u24 v35, 20, v1
    buffer_load_dwordx4 {vr(GX,4)}, v35, s[32:35], s24 offen
    buffer_load_dword v{GX+4}, v35, s[32:35], s24 offen offset:16
    buffer_load_dwordx4 {vr(GX+6,4)}, v35, s[36:39], 0 offen
    buffer_load_dword v{GX+10}, v35, s[36:39], 0 offen offset:16
    v_mul_u32_u24 v6, 80, v5
    v_add_u32 v6, {PHIQ}, v6
    v_lshl_add_u32 v7, v3, 4, v6
    buffer_load_dwordx4 {vr(PHQ,4)}, v7, s[28:31], 0 offen
    buffer_load_dwordx4 {vr(PHQ+4,4)}, v7, s[28:31], 0 offen offset:32
    buffer_load_dwordx4 {vr(PHQ+8,4)}, v6, s[28:31], 0 offen offset:64
    """)
    for c in (1, 2):
        dma(KVIMG + c * CHUNK, c * CHUNK, f"P{c}")
    a.stamp(2)
    a.e(f"""
    s_waitcnt vmcnt(30)
    v_mov_b32 v6, 0
    v_mov_b32 v7, 0
    v_mov_b32 v14, 0
    v_max_f32 v10, v10, v11
    v_max_f32 v12, v12, v13
    """)
    for i in range(4):
        a.e(f"v_dot2_f32_bf16 v6, v{Q1[0]+i}, v{Q1[0]+i}, v6")
        a.e(f"v_dot2_f32_bf16 v7, v{Q1[1]+i}, v{Q1[1]+i}, v7")
    for i in range(2):
        a.e(f"v_dot2_f32_bf16 v14, v{Q2+i}, v{Q2+i}, v14")
    for sh in (8, 4, 2, 1):
        a.e(f"v_max_f32_dpp v10, v10, v10 row_ror:{sh} row_mask:0xf bank_mask:0xf")
        a.e(f"v_max_f32_dpp v12, v12, v12 row_ror:{sh} row_mask:0xf bank_mask:0xf\ns_nop 0")
    a.e("""
    v_cmp_eq_u32 vcc, 0, v3
    v_mov_b32 v11, v10
    v_mov_b32 v13, v12
    v_cndmask_b32 v15, 0, v14, vcc
    v_sub_f32 v14, v14, v15
    v_add_f32 v6, v6, v15
    v_add_f32 v7, v7, v14
    v_mov_b32 v14, v6
    v_mov_b32 v15, v7
    v_permlane16_swap_b32 v10, v11
    v_permlane16_swap_b32 v12, v13
    v_permlane32_swap_b32 v6, v14
    v_permlane32_swap_b32 v7, v15
    s_nop 1
    v_max_f32 v10, v10, v11
    v_max_f32 v12, v12, v13
    v_add_f32 v6, v6, v14
    v_add_f32 v7, v7, v15
    v_mov_b32 v11, v10
    v_mov_b32 v13, v12
    s_nop 1
    v_permlane32_swap_b32 v10, v11
    v_permlane32_swap_b32 v12, v13
    s_nop 1
    v_max_f32 v10, v10, v11
    v_max_f32 v12, v12, v13
    v_add_f32 v10, v10, v12
    v_mul_f32 v6, v6, v10
    v_mul_f32 v7, v7, v10
    v_sqrt_f32 v6, v6
    v_sqrt_f32 v7, v7
    s_nop 0
    v_mul_f32 v6, 0xbf802000, v6
    v_mul_f32 v7, 0xbf802000, v7
    """)
    for i in range(16):
        a.e(f"v_mov_b32 v{CM+i}, v6\nv_mov_b32 v{CM+16+i}, v7")
    a.e(f"""
    s_waitcnt vmcnt(25)
    v_cmp_gt_u32 vcc, 420, v0
    s_and_saveexec_b64 s[44:45], vcc
    s_cbranch_execz K2_NOKV2
    """)
    for st in (4, 2, 1):
        for i in range(st):
            for h in range(2):
                x = KVR + 4 * i + 2 * h; y = KVR + 4 * (i + st) + 2 * h
                a.e(f"v_pk_add_f32 {vr(x,2)}, {vr(x,2)}, {vr(y,2)}")
    a.e(f"""
    v_lshlrev_b32 v6, 4, v0
    v_add_u32 v6, {SCR}, v6
    ds_write_b128 v6, {vr(KVR,4)}
    """)
    a.label("K2_NOKV2")
    a.e("s_mov_b64 exec, s[44:45]")
    a.e(f"""
    s_lshr_b32 s24, s21, 1
    s_mul_i32 s24, s24, 5
    s_and_b32 s25, s21, 1
    s_lshl_b32 s46, s25, 1
    v_add_u32 v6, s46, v9
    v_mov_b32 v7, 4
    v_cmp_eq_u32 vcc, 2, v9
    s_lshr_b32 s46, s20, 2
    s_mul_i32 s46, s46, 20
    v_cndmask_b32 v6, v6, v7, vcc
    v_add_u32 v6, s24, v6
    v_lshrrev_b32 v7, 2, v6
    v_add_u32 v7, s46, v7
    v_and_b32 v6, 3, v6
    s_mul_i32 s46, s22, 40
    v_add_u32 v7, s46, v7
    v_mul_u32_u24 v7, 5, v7
    v_mul_u32_u24 v10, 3277, v8
    v_lshrrev_b32 v10, 16, v10
    v_mul_u32_u24 v11, 20, v10
    v_sub_u32 v11, v8, v11
    v_lshrrev_b32 v12, 2, v11
    v_add_u32 v7, v7, v12
    v_and_b32 v11, 3, v11
    v_lshl_add_u32 v11, v10, 2, v11
    v_lshl_add_u32 v11, v6, 4, v11
    v_lshlrev_b32 v7, 10, v7
    v_lshl_add_u32 v7, v11, 4, v7
    v_add_u32 v7, {WT}, v7
    s_lshl_b32 s25, s25, 3
    s_waitcnt vmcnt(17)
    """)
    for j in range(4):
        a.e(f"v_lshl_or_b32 v{WOR+j}, v{WOR+2*j+1}, 16, v{WOR+2*j}")
    a.e(f"""
    v_cmp_gt_u32 vcc, 2, v9
    s_and_saveexec_b64 s[44:45], vcc
    s_cbranch_execz K2_NOW1
    buffer_store_dwordx4 {vr(WOR,4)}, v7, s[28:31], 0 offen
    """)
    a.label("K2_NOW1")
    a.e(f"""
    s_mov_b64 exec, s[44:45]
    v_cmp_eq_u32 vcc, 2, v9
    s_and_saveexec_b64 s[44:45], vcc
    s_cbranch_execz K2_NOW2
    buffer_store_dwordx2 {vr(WOR,2)}, v7, s[28:31], s25 offen
    """)
    a.label("K2_NOW2")
    a.e("s_mov_b64 exec, s[44:45]")
    a.e("s_waitcnt vmcnt(13)\nv_mov_b32 v6, 0")
    for i in range(5):
        a.e(f"v_dot2_f32_bf16 v6, v{GX+i}, v{GX+6+i}, v6")
    a.e("s_nop 2")
    for sh in (8, 4, 2, 1):
        a.e(f"v_add_f32_dpp v6, v6, v6 row_ror:{sh} row_mask:0xf bank_mask:0xf\ns_nop 1")
    a.e(f"""
    v_mov_b32 v7, v6
    s_nop 1
    v_permlane16_swap_b32 v6, v7
    s_nop 1
    v_add_f32 v6, v6, v7
    v_mov_b32 v7, v6
    s_nop 1
    v_permlane32_swap_b32 v6, v7
    s_nop 1
    v_add_f32 v6, v6, v7
    v_mul_f32 v6, 0x{f32bits(-LOG2E):x}, v6
    v_exp_f32 v6, v6
    s_nop 0
    v_add_f32 v6, 1.0, v6
    v_rcp_f32 v6, v6
    s_lshl_b32 s26, s26, 2
    s_add_u32 s26, s26, {GATE}
    v_mov_b32 v7, s26
    v_cmp_eq_u32 vcc, 0, v1
    s_and_saveexec_b64 s[44:45], vcc
    buffer_store_dword v6, v7, s[28:31], 0 offen
    s_mov_b64 exec, s[44:45]
    """)
    a.e(f"""
    s_mul_i32 s24, s50, {TILE}
    v_lshlrev_b32 v{AK1}, 4, v1
    v_add_u32 v{AK1}, s24, v{AK1}
    v_lshlrev_b32 v{AK2}, 3, v2
    v_add_u32 v{AK2}, 1024, v{AK2}
    v_add_u32 v{AK2}, s24, v{AK2}
    v_min_u32 v6, {21 if ZPAD else 20}, v2
    v_mul_u32_u24 v8, {VROWS}, v3
    v_mov_b32 v{IDX}, 0xdddddddd
    v_add_u32 v6, v6, v8
    v_lshlrev_b32 v{AV}, 4, v6
    v_add_u32 v{AV}, 1280, v{AV}
    v_add_u32 v{AV}, s24, v{AV}
    v_add_u32 v{NK1}, {CHUNK}, v{AK1}
    v_add_u32 v{NK2}, {CHUNK}, v{AK2}
    v_add_u32 v{NV}, {CHUNK}, v{AV}
    """)
    for i in range(32):
        a.e(f"v_mov_b32 v{O+i}, 0")
    for i in range(24, 32):
        a.e(f"v_mov_b32 v{S[1]+i}, 0")
    for i in range(4):
        a.e(f"v_mov_b32 v{VHI+i}, 0")
    a.stamp(3)
    a.e("s_waitcnt vmcnt(10) lgkmcnt(0)")
    a.stamp(4)
    a.e("s_barrier")
    a.stamp(8)
    T2 = 2 * TILE
    a.e(f"""
    ds_read_b128 {vr(KF1,4)}, v{AK1}
    ds_read_b64 {vr(KF2,2)}, v{AK2}
    s_waitcnt lgkmcnt(0)
    v_mfma_f32_32x32x16_bf16 {vr(S[0],16)}, {vr(KF1,4)}, {vr(Q1[0],4)}, {vr(CM,16)}
    v_mfma_f32_32x32x16_bf16 {vr(S[0]+16,16)}, {vr(KF1,4)}, {vr(Q1[1],4)}, {vr(CM+16,16)}
    s_nop 9
    v_mfma_f32_32x32x4_2b_bf16 {vr(S[0],32)}, {vr(KF2,2)}, {vr(Q2,2)}, {vr(S[0],32)}
    s_nop 3
    ds_read_b128 {vr(KF1,4)}, v{AK1} offset:{T2}
    ds_read_b64 {vr(KF2,2)}, v{AK2} offset:{T2}
    ds_read_b128 {vr(VLO,4)}, v{AV}
    s_mov_b32 s47, 0
    s_nop 15
    """)
    a.raw(".p2align 6")
    a.label("K2_LOOP")
    for j in range(8):
        X = S[j & 1]; Y = S[(j + 1) & 1]
        def E(lo, hi):
            for r in range(lo, hi): a.e(f"v_exp_f32 v{X+r}, v{X+r}")
        def rd(kind, tile):
            nxt = tile >= 8
            t = tile - 8 if nxt else tile
            if kind == "K1": a.e(f"ds_read_b128 {vr(KF1,4)}, v{NK1 if nxt else AK1} offset:{t*T2}")
            if kind == "K2": a.e(f"ds_read_b64 {vr(KF2,2)}, v{NK2 if nxt else AK2} offset:{t*T2}")
            if kind == "VLO": a.e(f"ds_read_b128 {vr(VLO,4)}, v{NV if nxt else AV} offset:{t*T2}")
            if kind == "VHI": a.e(f"ds_read_b128 {vr(VHI,4)}, v{NV if nxt else AV} offset:{t*T2+VBLK}")
        def PV(q, V, P): a.e(f"v_smfmac_f32_32x32x32_bf16 {vr(O+16*q,16)}, {vr(V,4)}, {vr(P,8)}, v{IDX}")
        if j == 6:
            a.e("s_waitcnt vmcnt(0)\ns_barrier\ns_cmp_lg_u32 s47, 1\ns_cbranch_scc1 K2_NODMA3")
            dma(KVIMG + 3 * CHUNK, 0, "L3")
            a.label("K2_NODMA3")
        E(0, 2)
        PV(1, VHI, Y + 24)
        rd("VHI", j)
        E(2, 5)
        a.e("s_waitcnt lgkmcnt(3)")
        a.e(f"v_mfma_f32_32x32x16_bf16 {vr(Y,16)}, {vr(KF1,4)}, {vr(Q1[0],4)}, {vr(CM,16)}")
        E(5, 9)
        a.e(f"v_mfma_f32_32x32x16_bf16 {vr(Y+16,16)}, {vr(KF1,4)}, {vr(Q1[1],4)}, {vr(CM+16,16)}")
        rd("K1", j + 2)
        E(9, 13)
        a.e("s_waitcnt lgkmcnt(2)")
        PV(0, VLO, X)
        E(13, 17)
        a.e(f"v_mfma_f32_32x32x4_2b_bf16 {vr(Y,32)}, {vr(KF2,2)}, {vr(Q2,2)}, {vr(Y,32)}")
        rd("K2", j + 2)
        E(17, 24)
        a.e("s_waitcnt lgkmcnt(2)")
        PV(0, VHI, X + 8)
        E(24, 28)
        PV(1, VLO, X + 16)
        rd("VLO", j + 1)
        E(28, 32)
        a.e("s_nop 1")
    a.e(f"""
    v_mov_b32 v{AK1}, v{NK1}
    v_mov_b32 v{AK2}, v{NK2}
    v_mov_b32 v{AV}, v{NV}
    s_cmp_eq_u32 s47, 1
    s_mov_b32 s48, {CHUNK}
    s_cselect_b32 s48, {(-2*CHUNK) & 0xffffffff}, s48
    v_add_u32 v{NK1}, s48, v{NK1}
    v_add_u32 v{NK2}, s48, v{NK2}
    v_add_u32 v{NV}, s48, v{NV}
    s_add_u32 s47, s47, 1
    s_cmp_lt_u32 s47, 4
    s_cbranch_scc1 K2_LOOP
    s_waitcnt lgkmcnt(0)
    v_smfmac_f32_32x32x32_bf16 {vr(O+16,16)}, {vr(VHI,4)}, {vr(S[1]+24,8)}, v{IDX}
    """)
    a.stamp(9)
    XB = 2 * CHUNK
    KVA = S[1]
    TMP = S[1] + 16
    TMPs = [CM, CM + 16, S[1] + 16]
    NUM = S[0]
    OF = S[0] + 16
    a.e(f"""
    v_min_u32 v6, 20, v2
    v_mul_u32_u24 v6, 160, v6
    v_lshl_add_u32 v6, v3, 5, v6
    v_add_u32 v6, {SCR}, v6
    s_mul_i32 s24, s20, 3072
    s_add_u32 s24, s24, {XB}
    v_lshlrev_b32 v7, 4, v1
    v_add_u32 v8, s24, v7
    s_xor_b32 s25, s20, 4
    s_mul_i32 s25, s25, 3072
    s_add_u32 s25, s25, {XB}
    v_add_u32 v9, s25, v7
    s_cmp_eq_u32 s50, 0
    s_cbranch_scc1 K2_X0
    """)
    for i in range(3):
        a.e(f"ds_write_b128 v8, {vr(O+4*i,4)} offset:{1024*i}")
    for i in range(12):
        a.e(f"v_mov_b32 v{OF+i}, v{O+16+i}")
    a.e("s_branch K2_X1")
    a.label("K2_X0")
    for i in range(3):
        a.e(f"ds_write_b128 v8, {vr(O+16+4*i,4)} offset:{1024*i}")
    for i in range(12):
        a.e(f"v_mov_b32 v{OF+i}, v{O+i}")
    a.label("K2_X1")
    for s in range(3):
        for p in range(2):
            a.e(f"ds_read_b128 {vr(TMPs[s]+p*8,4)}, v6 offset:{p*3360 + s*64}")
            a.e(f"ds_read_b128 {vr(TMPs[s]+p*8+4,4)}, v6 offset:{p*3360 + s*64 + 16}")
    a.e("v_cmp_eq_u32 vcc, 0, v3\ns_waitcnt lgkmcnt(0)\ns_barrier")
    for i in range(3):
        a.e(f"ds_read_b128 {vr(O+4*i,4)}, v9 offset:{1024*i}")
    for s in range(3):
        for j in range(4):
            x = TMPs[s] + 2 * j
            a.e(f"v_pk_add_f32 {vr(x,2)}, {vr(x,2)}, {vr(x+8,2)}")
        for j in range(4):
            x = TMPs[s] + 2 * j
            a.e(f"v_cvt_pk_bf16_f32 v{KVA+s*4+j}, v{x}, v{x+1}")
    a.e("v_mov_b32 v7, 0")
    for j in range(4):
        a.e(f"v_cndmask_b32 v{KVA+8+j}, v7, v{KVA+8+j}, vcc")
    a.e("s_nop 1")
    for s in range(3):
        cc = "0" if s == 0 else vr(NUM, 16)
        a.e(f"v_mfma_f32_32x32x16_bf16 {vr(NUM,16)}, {vr(KVA+4*s,4)}, {vr(PHQ+4*s,4)}, {cc}")
    a.e("s_waitcnt lgkmcnt(0)")
    for j in range(6):
        a.e(f"v_pk_add_f32 {vr(OF+2*j,2)}, {vr(OF+2*j,2)}, {vr(O+2*j,2)}")
    a.e(f"""
    v_mov_b32 v6, v{OF+8}
    v_mov_b32 v7, v{OF+8}
    s_nop 1
    v_permlane32_swap_b32 v6, v7
    s_nop 1
    v_cmp_le_f32 vcc, 0x{f32bits(THR):x}, v7
    s_nop 3
    s_cmp_eq_u64 vcc, -1
    s_cbranch_scc0 K2_FALLBACK
    """)
    a.label("K2_FIN2")
    a.e(f"""
    v_rcp_f32 v7, v7
    s_lshr_b32 s24, s21, 1
    s_mul_i32 s24, s24, 5
    s_and_b32 s25, s21, 1
    s_lshl_b32 s46, s25, 1
    s_add_u32 s46, s46, s24
    v_add_u32 v8, s46, v3
    v_lshrrev_b32 v9, 4, v4
    v_mul_u32_u24 v9, 40, v9
    v_and_b32 v10, 15, v4
    v_lshrrev_b32 v11, 2, v8
    v_add_u32 v11, v11, v9
    v_and_b32 v8, 3, v8
    v_lshl_add_u32 v8, v8, 4, v10
    v_lshl_add_u32 v8, v11, 6, v8
    v_lshlrev_b32 v8, 4, v8
    v_add_u32 v8, {OC}, v8
    s_add_u32 s24, s24, 4
    s_lshr_b32 s46, s24, 2
    s_and_b32 s24, s24, 3
    s_lshl_b32 s24, s24, 4
    v_add_u32 v11, s46, v9
    v_add_u32 v10, s24, v10
    v_lshl_add_u32 v10, v11, 6, v10
    v_lshlrev_b32 v10, 4, v10
    v_add_u32 v10, {OC}, v10
    s_lshl_b32 s25, s25, 3
    s_add_u32 s26, s25, {20*1024}
    s_mov_b32 s27, {20*1024}
    """)
    OUT = PHQ - 16
    for j in range(6):
        a.e(f"v_pk_mul_f32 {vr(OF+2*j,2)}, {vr(OF+2*j,2)}, v[6:7] op_sel:[0,1] op_sel_hi:[1,1]")
    for j in range(6):
        a.e(f"v_cvt_pk_bf16_f32 v{OUT+j}, v{OF+2*j}, v{OF+2*j+1}")
    a.e(f"""
    buffer_store_dwordx4 {vr(OUT,4)}, v8, s[28:31], s27 offen
    v_mov_b32 v6, v{NUM+8}
    v_mov_b32 v7, v{NUM+8}
    s_nop 1
    v_permlane32_swap_b32 v6, v7
    s_nop 1
    v_add_f32 v7, 0x{f32bits(1e-6):x}, v7
    v_rcp_f32 v7, v7
    s_nop 0
    """)
    for j in range(6):
        a.e(f"v_pk_mul_f32 {vr(NUM+2*j,2)}, {vr(NUM+2*j,2)}, v[6:7] op_sel:[0,1] op_sel_hi:[1,1]")
    for j in range(6):
        a.e(f"v_cvt_pk_bf16_f32 v{OUT+8+j}, v{NUM+2*j}, v{NUM+2*j+1}")
    a.e(f"""
    buffer_store_dwordx4 {vr(OUT+8,4)}, v8, s[28:31], 0 offen
    s_mov_b32 exec_hi, 0
    buffer_store_dwordx2 {vr(OUT+4,2)}, v10, s[28:31], s26 offen
    buffer_store_dwordx2 {vr(OUT+12,2)}, v10, s[28:31], s25 offen
    """)
    a.stamp(7); a.e("s_waitcnt vmcnt(0)" if PROFILE else ""); a.stamp(5); a.stamp(6, True); a.dump_stamps(1, 28, 20)
    a.e("s_endpgm")
    a.label("K2_FALLBACK")
    FS = S[1]; FQ1 = 12; FO = O
    a.e(f"""
    v_lshlrev_b32 v8, 4, v1
    v_lshlrev_b32 v9, 3, v2
    v_add_u32 v9, 1024, v9
    v_min_u32 v10, 21, v2
    v_mul_u32_u24 v11, {VROWS}, v3
    v_add_u32 v10, v10, v11
    v_lshlrev_b32 v10, 4, v10
    v_add_u32 v10, 1280, v10
    v_cmp_eq_u32 vcc, s50, v3
    s_cmp_eq_u32 s50, 0
    s_cbranch_scc1 K2_FB0
    v_mov_b32 v{Q1[0]}, v{Q1[1]}
    v_mov_b32 v{Q1[0]+1}, v{Q1[1]+1}
    v_mov_b32 v{Q1[0]+2}, v{Q1[1]+2}
    v_mov_b32 v{Q1[0]+3}, v{Q1[1]+3}
    """)
    a.label("K2_FB0")
    a.e(f"""
    v_cndmask_b32 v{Q2}, 0, v{Q2}, vcc
    v_cndmask_b32 v{Q2+1}, 0, v{Q2+1}, vcc
    v_mov_b32 v12, 0xff800000
    s_mov_b32 s24, {KVIMG}
    """)
    a.label("K2_FB1")
    a.e(f"""
    buffer_load_dwordx4 {vr(KF1,4)}, v8, s[28:31], s24 offen
    buffer_load_dwordx2 {vr(KF2,2)}, v9, s[28:31], s24 offen
    s_waitcnt vmcnt(0)
    v_mfma_f32_32x32x16_bf16 {vr(FS,16)}, {vr(KF1,4)}, {vr(Q1[0],4)}, 0
    v_mfma_f32_32x32x8_bf16 {vr(FS,16)}, {vr(KF2,2)}, {vr(Q2,2)}, {vr(FS,16)}
    s_nop 15
    """)
    for i in range(0, 16, 2):
        a.e(f"v_max3_f32 v12, v12, v{FS+i}, v{FS+i+1}")
    a.e(f"""
    s_add_u32 s24, s24, {TILE}
    s_cmp_lt_u32 s24, {KVIMG + 64*TILE}
    s_cbranch_scc1 K2_FB1
    v_mov_b32 v13, v12
    s_nop 1
    v_permlane32_swap_b32 v12, v13
    s_nop 1
    v_max_f32 v12, v12, v13
    v_sub_f32 v12, 0, v12
    """)
    for i in range(16):
        a.e(f"v_mov_b32 v{CM+i}, v12\nv_mov_b32 v{FO+i}, 0")
    a.e(f"s_mov_b32 s24, {KVIMG}")
    a.label("K2_FB2")
    a.e(f"""
    buffer_load_dwordx4 {vr(KF1,4)}, v8, s[28:31], s24 offen
    buffer_load_dwordx2 {vr(KF2,2)}, v9, s[28:31], s24 offen
    buffer_load_dwordx4 {vr(VLO,4)}, v10, s[28:31], s24 offen
    buffer_load_dwordx4 {vr(VHI,4)}, v10, s[28:31], s24 offen offset:{VBLK}
    s_waitcnt vmcnt(0)
    v_mfma_f32_32x32x16_bf16 {vr(FS,16)}, {vr(KF1,4)}, {vr(Q1[0],4)}, {vr(CM,16)}
    v_mfma_f32_32x32x8_bf16 {vr(FS,16)}, {vr(KF2,2)}, {vr(Q2,2)}, {vr(FS,16)}
    s_nop 15
    """)
    for i in range(16):
        a.e(f"v_exp_f32 v{FS+i}, v{FS+i}")
    a.e(f"""
    s_nop 3
    v_smfmac_f32_32x32x32_bf16 {vr(FO,16)}, {vr(VLO,4)}, {vr(FS,8)}, v{IDX}
    v_smfmac_f32_32x32x32_bf16 {vr(FO,16)}, {vr(VHI,4)}, {vr(FS+8,8)}, v{IDX}
    s_add_u32 s24, s24, {TILE}
    s_cmp_lt_u32 s24, {KVIMG + 64*TILE}
    s_nop 7
    s_cbranch_scc1 K2_FB2
    s_nop 15
    """)
    for i in range(12):
        a.e(f"v_mov_b32 v{OF+i}, v{FO+i}")
    a.e(f"""
    v_mov_b32 v6, v{OF+8}
    v_mov_b32 v7, v{OF+8}
    s_nop 1
    v_permlane32_swap_b32 v6, v7
    s_nop 1
    s_branch K2_FIN2
    """)
    a.label("K2_END")
    a.e("s_endpgm")
    return a
```

```python
from asmlib import *
from k1 import *

K3_LDS = 4 * 4 * 5 * 1024

def k3():
    a = Asm()
    a.e("""
    s_cmp_ge_u32 s2, 256
    s_cbranch_scc1 K3_END
    s_load_dwordx2 s[4:5], s[0:1], 80
    s_load_dwordx2 s[6:7], s[0:1], 96
    v_lshrrev_b32 v2, 6, v0
    v_and_b32 v1, 63, v0
    s_and_b32 s3, s2, 7
    v_readfirstlane_b32 s20, v2
    s_lshr_b32 s18, s2, 3
    s_lshr_b32 s21, s3, 1
    s_lshl_b32 s21, s21, 3
    s_and_b32 s19, s18, 7
    s_add_u32 s21, s21, s19
    s_and_b32 s22, s3, 1
    s_lshl_b32 s22, s22, 2
    s_lshr_b32 s19, s18, 3
    s_add_u32 s22, s22, s19
    v_lshlrev_b32 v2, 4, v1
    s_waitcnt lgkmcnt(0)
    """)
    a.init_stamps(); a.stamp(0, True); a.stamp(1)
    srd(a, 28, 6, 7, WS_SIZE)
    srd(a, 32, 4, 5, 2621440)
    a.e(f"""
    s_mul_i32 s24, s21, 160
    s_mul_i32 s25, s20, 10
    s_add_u32 s24, s24, s25
    s_lshl_b32 s24, s24, 10
    s_add_u32 s24, s24, {OC}
    s_mul_i32 s26, s22, 40
    s_add_u32 s26, s26, s25
    s_mul_i32 s26, s26, 5120
    s_add_u32 s26, s26, {WT}
    v_add_u32 v3, {40*1024}, v2
    v_add_u32 v4, {80*1024}, v2
    v_add_u32 v5, {120*1024}, v2
    v_add_u32 v6, 4096, v2
    v_and_b32 v8, 15, v1
    v_lshrrev_b32 v9, 4, v1
    s_lshl_b32 s27, s21, 6
    s_lshl_b32 s36, s20, 4
    s_add_u32 s27, s27, s36
    v_add_u32 v10, s27, v8
    v_lshlrev_b32 v11, 2, v10
    v_add_u32 v11, {GATE}, v11
    buffer_load_dword v12, v11, s[28:31], 0 offen
    """)
    ACC = 16
    def frag(k, idx):
        if k < 4:
            return vr(96 + k * 36 + idx * 4, 4)
        return vr((k - 4) * 36 + idx * 4, 4, "a")
    for k in range(10):
        for tt in range(4):
            a.e(f"buffer_load_dwordx4 {frag(k,tt)}, v{2+tt}, s[28:31], s24 offen")
        for t in range(4):
            a.e(f"buffer_load_dwordx4 {frag(k,4+t)}, v2, s[28:31], s26 offen offset:{t*1024}")
        a.e(f"buffer_load_dwordx4 {frag(k,8)}, v6, s[28:31], s26 offen")
        if k < 9:
            a.e("s_add_u32 s24, s24, 1024\ns_add_u32 s26, s26, 5120")
    a.stamp(2)
    for k in range(10):
        n = min(63, 9 * (9 - k))
        if k == 0 or n < 63 or True:
            a.e(f"s_waitcnt vmcnt({n})")
            if k == 0: a.stamp(3)
            if k == 9: a.stamp(4)
        for t in range(5):
            for tt in range(4):
                d = ACC + (tt * 5 + t) * 4
                cc = "0" if k == 0 else vr(d, 4)
                a.e(f"v_mfma_f32_16x16x32_bf16 {vr(d,4)}, {frag(k,4+t)}, {frag(k,tt)}, {cc}")
    a.e(f"""
    s_mul_i32 s36, s20, {4*5*1024}
    v_add_u32 v3, s36, v2
    s_mul_i32 s36, s20, {5*1024}
    v_add_u32 v4, s36, v2
    v_add_u32 v5, {2*4*5*1024}, v4
    s_nop 3
    """)
    for tt in range(4):
        for t in range(5):
            d = ACC + (tt * 5 + t) * 4
            a.e(f"ds_write_b128 v3, {vr(d,4)} offset:{(tt*5+t)*1024}")
    a.e("s_waitcnt lgkmcnt(0)")
    a.stamp(8)
    a.e("s_barrier")
    a.stamp(9)
    R = 96
    for src in range(4):
        for t in range(5):
            base = "v4" if src < 2 else "v5"
            a.e(f"ds_read_b128 {vr(R+(src*5+t)*4,4)}, {base} offset:{(src&1)*4*5*1024 + t*1024}")
    a.e(f"""
    v_sub_f32 v13, 1.0, v12
    v_mul_u32_u24 v10, 1280, v10
    s_mul_i32 s36, s22, 160
    v_mul_u32_u24 v11, 40, v9
    v_add3_u32 v10, v10, v11, s36
    s_waitcnt lgkmcnt(0)
    """)
    for j in range(10):
        x = R + 2 * j
        a.e(f"v_pk_add_f32 {vr(x,2)}, {vr(x,2)}, {vr(x+20,2)}")
        a.e(f"v_pk_add_f32 {vr(x+40,2)}, {vr(x+40,2)}, {vr(x+60,2)}")
    for j in range(10):
        x = R + 2 * j
        a.e(f"v_pk_mul_f32 {vr(x,2)}, {vr(x,2)}, v[12:13] op_sel_hi:[1,0]")
        a.e(f"v_pk_fma_f32 {vr(x,2)}, {vr(x+40,2)}, v[12:13], {vr(x,2)} op_sel:[0,1,0] op_sel_hi:[1,1,1]")
    for j in range(10):
        x = R + 2 * j
        a.e(f"v_cvt_pk_bf16_f32 v{16+j}, v{x}, v{x+1}")
    a.e("""
    buffer_store_dwordx4 v[16:19], v10, s[32:35], 0 offen
    buffer_store_dwordx4 v[20:23], v10, s[32:35], 0 offen offset:16
    buffer_store_dwordx2 v[24:25], v10, s[32:35], 0 offen offset:32
    """)
    a.stamp(7); a.e("s_waitcnt vmcnt(0)" if PROFILE else ""); a.stamp(5); a.stamp(6, True); a.dump_stamps(2, 28, 20)
    a.label("K3_END")
    a.e("s_endpgm")
    return a
```
